```python
import torch

def _softmax(x, axis=-1):
    return torch.softmax(x, dim=axis)
def _gelu(x):
    return torch.nn.functional.gelu(x, approximate="tanh")
def _silu(x):
    return torch.nn.functional.silu(x)
def _sigmoid(x):
    return torch.sigmoid(x)
def _layernorm(x, axis=-1, eps=1e-5):
    m = x.mean(dim=axis, keepdim=True)
    v = x.var(dim=axis, keepdim=True, unbiased=False)
    return (x - m) / torch.sqrt(v + eps)
def _scatter_add(tgt, idx, src, axis=0):
    return tgt.clone().index_add_(axis, idx, src)
def _segment_sum(src, seg, n):
    out = torch.zeros((n,) + src.shape[1:], dtype=src.dtype)
    return out.index_add_(0, seg, src)
def _pad(x, pw):
    flat = tuple(v for pair in reversed(pw) for v in pair)
    return torch.nn.functional.pad(x, flat)

kernel_name = 'standalone__edge_featured_mpnn_mpnn__graph'

def setup_inputs():

    _w = (lambda a: (lambda t: t.to(torch.bfloat16) if t.is_floating_point() else t)(torch.as_tensor(a)))
    N, deg, D, De = 25000, 32, 64, max(4, 1)
    E = N * deg
    H = 2 * D
    return {
        "x": _w((lambda *s: torch.randn(*s, dtype=torch.bfloat16) * 0.05)(N, D)),
        "e_attr": _w((lambda *s: torch.randn(*s, dtype=torch.bfloat16) * 1.6)(E, De)),
        "src": _w((lambda lo, hi, *s: torch.randint(lo, hi, s))(0, N, E).to(torch.int64)),
        "dst": _w((lambda lo, hi, *s: torch.randint(lo, hi, s))(0, N, E).to(torch.int64)),
        "w1": _w((lambda *s: torch.randn(*s, dtype=torch.bfloat16) * 1.6)(2 * D + De, H) * (1.0 / (2 * D + De) ** 0.5)),
        "b1": _w((lambda *s: torch.randn(*s, dtype=torch.bfloat16) * 3.2)(H) * 0.01),
        "w2": _w((lambda *s: torch.randn(*s, dtype=torch.bfloat16) * 0.05)(H, D) * (1.0 / H ** 0.5)),
        "b2": _w((lambda *s: torch.randn(*s, dtype=torch.bfloat16) * 0.1)(D) * 0.01),
    }

def reference(x, e_attr, src, dst, w1, b1, w2, b2):
    N, D = x.shape
    h_src = x[src]
    h_dst = x[dst]
    m_in = torch.concatenate([h_src, h_dst, e_attr], axis=-1)
    h = _silu(m_in @ w1 + b1)
    msg = h @ w2 + b2
    return _segment_sum(msg, dst, N)
```

```python
import re
class Asm:
    def __init__(self):
        self.lines = []
    def __call__(self, s):
        for l in s.split("\n"):
            l = l.strip()
            if l: self.lines.append(l)
    def label(self, n): self.lines.append(n + ":")
    def nop(self, n):
        while n > 0:
            k = min(n, 16); self.lines.append(f"s_nop {k-1}"); n -= k
    def text(self):
        return "\n".join(("" if l.endswith(":") else "    ") + l for l in self.lines) + "\n"

def vr(a, n=1): return f"v{a}" if n == 1 else f"v[{a}:{a+n-1}]"
def sr(a, n=1): return f"s{a}" if n == 1 else f"s[{a}:{a+n-1}]"

def regs_of(op):
    op = op.strip()
    op = op.lstrip("-").strip("|")
    m = re.fullmatch(r"([vsa])(\d+)", op)
    if m: return {(m.group(1), int(m.group(2)))}
    m = re.fullmatch(r"([vsa])\[(\d+):(\d+)\]", op)
    if m: return {(m.group(1), i) for i in range(int(m.group(2)), int(m.group(3)) + 1)}
    if op == "vcc": return {("s", "vcc")}
    if op in ("vcc_lo", "vcc_hi"): return {("s", "vcc")}
    if op == "exec": return {("s", "exec")}
    if op == "m0": return {("s", "m0")}
    return set()

TRANS = ("v_exp_f32", "v_rcp_f32", "v_log_f32", "v_rsq_f32", "v_sqrt_f32")
def parse(l):
    l = l.split(";")[0].strip()
    parts = l.split(None, 1)
    mn = parts[0]
    rest = parts[1] if len(parts) > 1 else ""
    ops = [o.strip() for o in rest.split(",")] if rest else []
    mods = ""
    if ops:
        joined = rest
        m = re.search(r"\s(op_sel|op_sel_hi|neg_lo|neg_hi|offset|offset0|offset1|offen|idxen|row_|wave_|quad_perm|dst_sel|lds|sc0|sc1|nt|clamp|off\b)", " " + joined)
        if m:
            mods = joined[m.start():]; joined = joined[:m.start()]
        ops = [o.strip() for o in joined.split(",") if o.strip()]
    return mn, ops, mods

def defs_uses(mn, ops, mods):
    d, u = set(), set()
    R = [regs_of(o) for o in ops]
    if mn.startswith("v_cmpx"):
        d |= R[0] | {("s", "exec")}; [u.update(r) for r in R[1:]]
    elif mn.startswith("v_cmp") or mn.startswith("v_readlane") or mn.startswith("v_readfirstlane"):
        d |= R[0]; [u.update(r) for r in R[1:]]
    elif mn.startswith("v_permlane"):
        d |= R[0] | R[1]; u |= R[0] | R[1]
    elif mn.startswith(("v_add_co", "v_sub_co", "v_addc_co", "v_subb_co")):
        d |= R[0] | R[1]; [u.update(r) for r in R[2:]]
    elif mn.startswith("v_"):
        d |= R[0]; [u.update(r) for r in R[1:]]
        if mn.startswith(("v_fmac", "v_writelane")) or "dpp" in mn: u |= R[0]
    elif mn.startswith("ds_"):
        if mn.startswith(("ds_read", "ds_bpermute", "ds_permute", "ds_swizzle")) or "_rtn" in mn:
            d |= R[0]; [u.update(r) for r in R[1:]]
        else: [u.update(r) for r in R]
    elif mn.startswith(("buffer_load", "global_load")):
        if "lds" in mods or "lds" in mn: [u.update(r) for r in R]; u.add(("s", "m0"))
        else: d |= R[0]; [u.update(r) for r in R[1:]]
    elif mn.startswith(("buffer_", "global_")):
        [u.update(r) for r in R]
    elif mn.startswith("s_"):
        if mn.startswith(("s_cmp", "s_bitcmp", "s_cbranch", "s_branch", "s_waitcnt", "s_nop", "s_barrier", "s_setprio", "s_endpgm", "s_sleep")):
            [u.update(r) for r in R]
        else:
            if R: d |= R[0]
            [u.update(r) for r in R[1:]]
            if "saveexec" in mn: d.add(("s", "exec"))
    return d, u

def lint(lines, verbose=True):
    ins = []
    for l in lines:
        if l.endswith(":") or l.startswith((".", ";")):
            continue
        mn, ops, mods = parse(l)
        d, u = defs_uses(mn, ops, mods)
        ins.append((l, mn, ops, mods, d, u))
    probs = []
    for i, (l, mn, ops, mods, d, u) in enumerate(ins):
        dist = 0
        for j in range(i - 1, max(-1, i - 24), -1):
            pl, pmn, pops, pmods, pd, pu = ins[j]
            if pmn in ("s_branch", "s_endpgm"): break
            need = 0
            isv = mn.startswith("v_"); pisv = pmn.startswith("v_")
            pm = pmn.startswith("v_mfma"); cm = mn.startswith("v_mfma")
            vmem = mn.startswith(("buffer_", "global_")); dsop = mn.startswith("ds_")
            sd = {r for r in pd if r[0] == "s"}; vd = {r for r in pd if r[0] != "s"}
            if pisv and not pm:
                if vmem and (sd - {("s", "exec")}) & u: need = max(need, 5)
                if isv and (sd - {("s", "exec")}) & u:
                    need = max(need, 4 if mn.startswith(("v_readlane", "v_writelane")) else 2)
                if isv and mn.startswith("v_cndmask") and len(ops) == 3 and ("s", "vcc") in sd: need = max(need, 2)
                if ("s", "exec") in sd:
                    if "dpp" in mn: need = max(need, 5)
                    if mn.startswith(("v_readlane", "v_readfirstlane", "v_writelane", "v_permlane")) or cm: need = max(need, 4)
                if "dpp" in mn and vd & u: need = max(need, 2)
                if mn.startswith(("v_readlane", "v_readfirstlane")) and vd & u: need = max(need, 1)
                if mn.startswith("v_permlane") and vd & u: need = max(need, 2)
                if cm and vd & u: need = max(need, 2)
                if pmn.startswith(TRANS) and isv and not mn.startswith(TRANS) and vd & u: need = max(need, 1)
            if pm:
                big = "32x32" in pmn
                if cm:
                    ab = regs_of(ops[1]) | regs_of(ops[2])
                    if vd & ab: need = max(need, 12 if big else 8)
                    c = regs_of(ops[3])
                    if vd & c and c != vd: need = max(need, 10 if big else 6)
                elif (isv or vmem or dsop) and (vd & (u | d)): need = max(need, 12 if big else 8)
                if isv and not cm and (regs_of(pops[3]) & d): need = max(need, 7 if big else 3)
            if pmn.startswith("s_") and ("s", "m0") in pd and ("s", "m0") in u and (vmem or dsop): need = max(need, 1)
            if re.match(r"(buffer|global)_store_dwordx[34]", pmn) and isv:
                data = regs_of(pops[0]) if pmn.startswith("buffer") else regs_of(pops[1])
                if data & d: need = max(need, 2)
            if need > dist:
                probs.append(f"HAZARD need {need} have {dist}: [{pl}] -> [{l}]")
            if pmn == "s_nop": dist += int(pops[0]) + 1
            else: dist += 1
    if verbose:
        for p in probs: print(p)
    return probs
```

```python
from asmlib import *
from layout import *
E = 800000
NEG_L2E = "0xbfb8aa3b"

def srd(A, d, base, nbytes, off=0):
    if off:
        A(f"s_add_u32 s{d}, s{base}, {hex(off)}\ns_addc_u32 s{d+1}, s{base+1}, 0")
    else:
        A(f"s_mov_b32 s{d}, s{base}\ns_mov_b32 s{d+1}, s{base+1}")
    A(f"s_mov_b32 s{d+2}, {hex(nbytes)}\ns_mov_b32 s{d+3}, 0x20000")

def wave_scan(A, v, op="v_add_u32", other=None):
    regs = [(v, op)] + (other or [])
    steps = ["row_shr:1 row_mask:0xf", "row_shr:2 row_mask:0xf", "row_shr:4 row_mask:0xf", "row_shr:8 row_mask:0xf",
             "row_bcast:15 row_mask:0xa", "row_bcast:31 row_mask:0xc"]
    for st in steps:
        A.nop(max(0, 2 - (len(regs) - 1)) if st != steps[0] else 2)
        for r, o in regs:
            A(f"{o}_dpp v{r}, v{r}, v{r} {st} bank_mask:0xf")

def stamp(A, cfg, s):
    if cfg.get("stamps"): A(f"s_memrealtime s[{s}:{s+1}]")

def stamp_store(A, cfg, s0, n, srdreg, wsbase, off, wgreg, vtmp, nper):
    if not cfg.get("stamps"): return
    A("s_waitcnt lgkmcnt(0)")
    srd(A, srdreg, wsbase, 0x100000, off)
    A(f"s_mul_i32 s{srdreg+4}, s{wgreg}, {nper*8}")
    A("s_mov_b64 exec, 1")
    A(f"v_mov_b32 v{vtmp+2}, 0")
    for i in range(n):
        A(f"v_mov_b32 v{vtmp}, s{s0+2*i}\nv_mov_b32 v{vtmp+1}, s{s0+2*i+1}")
        A(f"buffer_store_dwordx2 v[{vtmp}:{vtmp+1}], v{vtmp+2}, s[{srdreg}:{srdreg+3}], s{srdreg+4} offen offset:{8*i}")
        A("s_waitcnt vmcnt(0)")

P1_LDS_CNT, P1_LDS_BASE, P1_LDS_KEY = 0, 1024, 2048
P1_LDS_E = P1_LDS_KEY + CH * 4
P1_LDS = P1_LDS_E + CH * 8
P1_THREADS = 896

def gen_p1(cfg):
    A = Asm()
    st = cfg.get("p1_store", "")
    ld = cfg.get("p1_load", "")
    A("s_cmp_ge_u32 s2, 256\ns_cbranch_scc1 P1_END")
    stamp(A, cfg, 60)
    A("s_load_dwordx4 s[4:7], s[0:1], 8\ns_load_dwordx2 s[8:9], s[0:1], 24\ns_load_dwordx2 s[10:11], s[0:1], 80\ns_load_dwordx8 s[12:19], s[0:1], 32")
    A("v_lshrrev_b32 v1, 6, v0\nv_lshlrev_b32 v2, 2, v0\nv_mov_b32 v3, 0")
    A("v_readfirstlane_b32 s3, v1")
    A(f"s_mul_i32 s44, s2, {CH}")
    A(f"s_sub_u32 s45, {E}, s44\ns_min_u32 s45, s45, {CH}\ns_lshr_b32 s45, s45, 2")
    A("s_cmp_eq_u32 s3, 13\ns_cbranch_scc1 P1_PREP")
    A("v_cmp_gt_u32 vcc, 256, v0\ns_and_saveexec_b64 s[46:47], vcc\nds_write_b32 v2, v3\ns_mov_b64 exec, s[46:47]")
    A("v_lshlrev_b32 v4, 4, v0\nv_lshlrev_b32 v5, 5, v0")
    A("s_lshl_b32 s48, s44, 2\ns_lshl_b32 s49, s44, 3")
    A("v_cmp_gt_u32 s[46:47], s45, v0")
    A("s_waitcnt lgkmcnt(0)")
    stamp(A, cfg, 62)
    srd(A, 20, 8, E * 4); srd(A, 24, 6, E * 4); srd(A, 28, 4, E * 8)
    A("s_mov_b64 exec, s[46:47]")
    A(f"buffer_load_dwordx4 v[8:11], v4, s[20:23], s48 offen {ld}")
    A(f"buffer_load_dwordx4 v[12:15], v4, s[24:27], s48 offen {ld}")
    A(f"buffer_load_dwordx4 v[16:19], v5, s[28:31], s49 offen {ld}")
    A(f"buffer_load_dwordx4 v[20:23], v5, s[28:31], s49 offen offset:16 {ld}")
    stamp(A, cfg, 64)
    srd(A, 32, 10, E * 4, WS_KEYS); srd(A, 36, 10, E * 8, WS_EREC); srd(A, 40, 10, 65537 * 4, WS_OFFS)
    A("s_mov_b32 s50, 42800\nv_mov_b32 v6, 1")
    A("s_barrier")
    stamp(A, cfg, 66)
    A("s_waitcnt vmcnt(3)")
    stamp(A, cfg, 68)
    for i in range(4):
        A(f"v_mul_u32_u24 v{24+i}, s50, v{8+i}\nv_lshrrev_b32 v{24+i}, 22, v{24+i}\nv_lshlrev_b32 v{24+i}, 2, v{24+i}")
        A(f"ds_add_rtn_u32 v{28+i}, v{24+i}, v6")
    A("s_mov_b64 exec, -1")
    A("v_and_b32 v7, 63, v0\nv_lshlrev_b32 v7, 4, v7")
    A("s_waitcnt lgkmcnt(0)\ns_barrier")
    A("ds_read_b128 v[32:35], v7")
    A("s_waitcnt lgkmcnt(0)")
    A("v_add_u32 v37, v32, v33\nv_add_u32 v38, v37, v34\nv_add_u32 v40, v38, v35\nv_mov_b32 v41, v40")
    wave_scan(A, 40)
    A("v_sub_u32 v36, v40, v41")
    A("v_add_u32 v39, v36, v38\nv_add_u32 v38, v36, v37\nv_add_u32 v37, v36, v32")
    A(f"ds_write_b128 v7, v[36:39] offset:{P1_LDS_BASE}")
    A("s_cmp_lg_u32 s3, 0\ns_cbranch_scc1 P1_NOOFFS")
    for i in range(4):
        A(f"v_min_u32 v{32+i}, 255, v{32+i}\nv_add_u32 v{44+i}, s44, v{36+i}\nv_lshl_or_b32 v{44+i}, v{32+i}, 24, v{44+i}")
    A("s_lshl_b32 s51, s2, 10")
    A(f"buffer_store_dwordx4 v[44:47], v7, s[40:43], s51 offen {st}")
    A("s_cmp_lg_u32 s2, 255\ns_cbranch_scc1 P1_NOOFFS")
    A(f"v_mov_b32 v48, {E}\nv_mov_b32 v49, 0x40000")
    A(f"buffer_store_dword v48, v49, s[40:43], 0 offen {st}")
    A.label("P1_NOOFFS")
    A("s_mov_b64 exec, s[46:47]")
    for i in range(4):
        A(f"ds_read_b32 v{32+i}, v{24+i} offset:{P1_LDS_BASE}")
    A("s_waitcnt vmcnt(0) lgkmcnt(0)") if cfg.get("p1_simplewait", True) else None
    stamp(A, cfg, 70)
    for i in range(4):
        A(f"v_add_lshl_u32 v{32+i}, v{32+i}, v{28+i}, 2")
        A(f"v_lshl_or_b32 v{12+i}, v{8+i}, 16, v{12+i}")
        A(f"ds_write_b32 v{32+i}, v{12+i} offset:{P1_LDS_KEY}")
        A(f"v_lshlrev_b32 v{36+i}, 1, v{32+i}")
        A(f"ds_write_b64 v{36+i}, v[{16+2*i}:{17+2*i}] offset:{P1_LDS_E}")
    A("s_lshl_b32 s52, s45, 4\ns_add_u32 s53, s49, s52\nv_add_u32 v5, s52, v4")
    A("s_waitcnt lgkmcnt(0)\ns_barrier")
    stamp(A, cfg, 72)
    A(f"ds_read_b128 v[8:11], v4 offset:{P1_LDS_KEY}")
    A(f"ds_read_b128 v[12:15], v4 offset:{P1_LDS_E}")
    A(f"ds_read_b128 v[16:19], v5 offset:{P1_LDS_E}")
    A(f"s_waitcnt lgkmcnt(2)\nbuffer_store_dwordx4 v[8:11], v4, s[32:35], s48 offen {st}")
    A(f"s_waitcnt lgkmcnt(1)\nbuffer_store_dwordx4 v[12:15], v4, s[36:39], s49 offen {st}")
    A(f"s_waitcnt lgkmcnt(0)\nbuffer_store_dwordx4 v[16:19], v4, s[36:39], s53 offen {st}")
    if cfg.get("stamps"):
        stamp(A, cfg, 74)
        A("s_waitcnt vmcnt(0)")
        stamp(A, cfg, 76)
        A("s_cmp_lg_u32 s3, 0\ns_cbranch_scc1 P1_END")
        stamp_store(A, cfg, 60, 9, 80, 10, WS_STAMP1, 2, 50, 9)
    A("s_endpgm")
    A.label("P1_PREP")
    A("s_barrier")
    A("v_and_b32 v1, 63, v0")
    A("s_waitcnt lgkmcnt(0)")
    srd(A, 20, 12, 132 * 128 * 2)
    srd(A, 24, 16, 128 * 64 * 2)
    srd(A, 28, 14, 128 * 2)
    srd(A, 32, 18, 64 * 2)
    srd(A, 40, 10, 52224, WS_PREP)
    A(f"s_mov_b32 s50, {NEG_L2E}")
    A("s_lshl_b32 s51, s2, 8\nv_lshlrev_b32 v2, 2, v1")
    A("s_and_b32 s52, s2, 3\ns_lshl_b32 s52, s52, 4\nv_lshrrev_b32 v3, 2, v1\nv_add_u32 v3, s52, v3")
    A("v_and_b32 v4, 3, v1")
    A("v_lshrrev_b32 v5, 5, v3\nv_and_b32 v6, 31, v3")
    A("v_lshlrev_b32 v5, 3, v5\nv_lshl_add_u32 v5, v4, 1, v5")
    A("s_bfe_u32 s53, s2, 0x40002")
    A("s_cmp_ge_u32 s2, 128\ns_cbranch_scc1 P1_PREP_W2")
    A("s_and_b32 s54, s53, 3\ns_lshl_b32 s54, s54, 4\ns_and_b32 s55, s2, 64\ns_add_u32 s54, s54, s55")
    A("s_lshr_b32 s55, s53, 2\ns_lshl_b32 s55, s55, 5")
    A("v_add_u32 v5, s54, v5\nv_add_u32 v6, s55, v6\nv_lshlrev_b32 v6, 1, v6\nv_lshl_add_u32 v5, v5, 8, v6")
    A("buffer_load_ushort v8, v5, s[20:23], 0 offen\nbuffer_load_ushort v9, v5, s[20:23], 0 offen offset:256")
    A("s_waitcnt vmcnt(0)")
    A("v_lshl_or_b32 v10, v9, 16, v8")
    A("s_cmp_ge_u32 s2, 64\ns_cbranch_scc1 P1_PREP_ST")
    A("v_lshlrev_b32 v8, 16, v8\nv_lshlrev_b32 v9, 16, v9\nv_mul_f32 v8, s50, v8\nv_mul_f32 v9, s50, v9\nv_cvt_pk_bf16_f32 v10, v8, v9")
    A("s_branch P1_PREP_ST")
    A.label("P1_PREP_W2")
    A("s_cmp_ge_u32 s2, 192\ns_cbranch_scc1 P1_PREP_WC")
    A("s_and_b32 s54, s53, 7\ns_lshl_b32 s54, s54, 4\ns_lshr_b32 s55, s53, 3\ns_lshl_b32 s55, s55, 5")
    A("v_add_u32 v5, s54, v5")
    A("v_and_b32 v7, 3, v5\nv_lshrrev_b32 v5, 2, v5\nv_lshl_add_u32 v5, v7, 5, v5")
    A("v_add_u32 v6, s55, v6\nv_lshlrev_b32 v6, 1, v6\nv_lshl_add_u32 v5, v5, 7, v6")
    A("s_movk_i32 s54, 0x1000")
    A("buffer_load_ushort v8, v5, s[24:27], 0 offen\nbuffer_load_ushort v9, v5, s[24:27], s54 offen")
    A("s_waitcnt vmcnt(0)")
    A("v_lshl_or_b32 v10, v9, 16, v8")
    A("s_branch P1_PREP_ST")
    A.label("P1_PREP_WC")
    A("s_cmp_ge_u32 s2, 200\ns_cbranch_scc1 P1_PREP_B")
    A("s_and_b32 s54, s2, 3\ns_add_u32 s54, s54, 128\ns_lshl_b32 s54, s54, 8")
    A("buffer_load_dword v7, v2, s[20:23], s54 offen")
    A("s_waitcnt vmcnt(0)")
    A("v_lshlrev_b32 v8, 16, v7\nv_and_b32 v9, 0xffff0000, v7\nv_mul_f32 v8, s50, v8\nv_mul_f32 v9, s50, v9\nv_cvt_pk_bf16_f32 v10, v8, v9")
    A("s_cmp_lt_u32 s2, 196\ns_cbranch_scc1 P1_PREP_ST")
    A("v_lshlrev_b32 v11, 16, v10\nv_and_b32 v12, 0xffff0000, v10\nv_sub_f32 v8, v8, v11\nv_sub_f32 v9, v9, v12\nv_cvt_pk_bf16_f32 v10, v8, v9")
    A("s_branch P1_PREP_ST")
    A.label("P1_PREP_B")
    A("s_cmp_ge_u32 s2, 203\ns_cbranch_scc1 P1_END")
    A("v_lshlrev_b32 v5, 1, v1")
    A("s_cmp_eq_u32 s2, 202\ns_cbranch_scc1 P1_PREP_B2")
    A("s_sub_u32 s54, s2, 200\ns_lshl_b32 s54, s54, 7")
    A("buffer_load_ushort v8, v5, s[28:31], s54 offen")
    A("s_branch P1_PREP_B3")
    A.label("P1_PREP_B2")
    A("buffer_load_ushort v8, v5, s[32:35], 0 offen")
    A.label("P1_PREP_B3")
    A("s_waitcnt vmcnt(0)")
    A("v_lshlrev_b32 v10, 16, v8")
    A.label("P1_PREP_ST")
    A(f"buffer_store_dword v10, v2, s[40:43], s51 offen {st}")
    A.label("P1_END")
    A("s_endpgm")
    return A
```

```python
from asmlib import *
from layout import *
from p1 import srd, wave_scan, stamp, stamp_store, NEG_L2E
E = 800000; N = 25000
PAT = 0; TFLG = 160; FBF = 192; LMAXA = 196
CNT = 256; INFO = 768; SNODE = 1280; HIST = 1792; LRUN = 2048; START = 2304
KEY = 2560; CAPALL = 128; CAPT = 126
EE = KEY + CAPALL * 128
TT = EE + CAPALL * 256
QQ = TT + 16384
RS = 272
SS = QQ + 108 * RS
STG = SS + 100 * RS
LDS_TOTAL = STG + 32768
assert STG % 256 == 0 and LDS_TOTAL <= 163840
SF = KEY
PR_WA, PR_WB, PR_W2, PR_WC, PR_B1, PR_B2 = 0, 16384, 32768, 49152, 51200, 51712
W0 = 192; B5 = 176; A0 = 156; A5 = 172; ZA = 124; ZB = 140; T0 = 108; ND = 92; SND = 76; U = 74
vLane = 1
aA = 2
aX = 6; incX = 7
def Wf(b, s): return W0 + (b * 4 + s) * 4
aIdx = 8; chE = 9; chO = 10; vAux = 11; IDX = 12
vStart = 16; dmax = 17; chk = 18
cQ = 20; aQe = 21; aQo = 22; cSn = 23; cFl = 24; cS = 25; FA = 26
tq = 28
aT = 30; vtmp = 32
sW = 3
SRD_X, SRD_OFFS, SRD_KEYS, SRD_EREC, SRD_PREP, SRD_OUT = 12, 16, 20, 24, 28, 32
MASK = 36
sG0, sG1, sR, sBnd, sHead, sStg, sS, sK128 = 68, 69, 70, 71, 72, 73, 74, 75
sLo, sHi, sOne = 76, 78, 80
sT0, sT1, sT2, sT3, sT4, sT5 = 82, 83, 84, 85, 86, 87
sN0 = 88
STAMP0 = 36

def pr(r): return f"v[{r}:{r+1}]"
def pkfma(d, a, b, c): return f"v_pk_fma_f32 {pr(d)}, {pr(a)}, {pr(b)}, {pr(c)}"
def mfma(d, a, b, c):
    cs = "0" if c is None else vr(c, 16)
    return f"v_mfma_f32_32x32x16_bf16 {vr(d,16)}, {vr(a,4)}, {vr(b,4)}, {cs}"

def block_mfmas(z, b):
    L = [mfma(z, A0 + 4 * s, Wf(b, s), None if s == 0 else z) for s in range(4)]
    L.append(mfma(z, A5, B5 + 4 * b, z))
    return L

def phaseA(zc, zn, bn):
    ms = block_mfmas(zn, bn)
    out = []
    for i in range(16):
        if i % 3 == 0 and i // 3 < 5: out.append(ms[i // 3])
        out.append(f"v_exp_f32 v{T0+i}, v{zc+i}")
    return out

def chain(z, b, sstar):
    Nr, Dr = ND + 4 * b, ND + 4 * b + 2
    SNr, SDr = SND + 4 * b, SND + 4 * b + 2
    out = []
    ncur = Nr
    for m in range(8):
        t = T0 + 2 * m; zz = z + 2 * m
        if sstar and m == sstar:
            out.append(f"v_pk_add_f32 {pr(Dr)}, {pr(t)}, {sr(sOne,2)}")
            ncur = zz
            if m == 7: out.append(f"v_mov_b64 {pr(Nr)}, {pr(zz)}")
            continue
        last_old = sstar and m == sstar - 1
        out.append(pkfma(U, ncur, t, ncur))
        out.append(pkfma(SNr if last_old else Nr, zz, Dr, U))
        out.append(pkfma(SDr if last_old else Dr, Dr, t, Dr))
        ncur = Nr
    if sstar == 8:
        out.append(f"v_mov_b64 {pr(Nr)}, 0")
        out.append(f"v_mov_b64 {pr(Dr)}, {sr(sOne,2)}")
    return out

def weave(base, ins):
    out = []
    d = {}
    for p, l in ins: d.setdefault(min(p, len(base)), []).extend(l)
    for i in range(len(base) + 1):
        out += d.get(i, [])
        if i < len(base): out.append(base[i])
    return out

EXLO = f"s_mov_b64 exec, {sr(sLo,2)}"; EXHI = f"s_mov_b64 exec, {sr(sHi,2)}"; EXALL = "s_mov_b64 exec, -1"

def read_idx(): return [f"ds_read_b128 {vr(IDX,4)}, v{aIdx}"]
def read_aux(): return [EXLO, f"ds_read_u16 v{vAux}, v{aX}", EXALL]
def calc_voff():
    return [f"v_mad_u32_u16 v{IDX+u}, v{IDX+u}, s{sK128}, v{chO if u & 1 else chE}" for u in range(4)] + [f"v_add_u32 v{aIdx}, 128, v{aIdx}"]
def read_A():
    return [f"ds_read_b128 {vr(A0+4*s,4)}, v{aA+s}" for s in range(4)]
def read_A5():
    return [EXLO, f"ds_read_b128 {vr(A5,4)}, v{vAux}", EXHI, f"ds_read2_b64 {vr(A5,4)}, v{aX} offset0:0 offset1:0", EXALL]
def dma(cfg):
    L = []
    for u in range(4):
        L.append(f"s_add_u32 m0, s{sStg}, {u*1024}" if u else f"s_mov_b32 m0, s{sStg}")
        L.append("s_nop 0")
        L.append(f"buffer_load_dwordx4 v{IDX+u}, {sr(SRD_X,4)}, 0 offen lds")
    return L
def q_addr_read(nxt):
    return [f"s_add_u32 s{sT0}, s{sR}, {nxt+1}", f"s_and_b32 s{sT0}, s{sT0}, -2", f"s_lshl_b32 s{sT0}, s{sT0}, 4",
            f"s_add_u32 s{sT1}, s{sR}, {nxt}", f"s_or_b32 s{sT1}, s{sT1}, 1", f"s_lshl_b32 s{sT1}, s{sT1}, 4",
            f"v_add_u32 v{tq}, s{sT0}, v{cSn}", f"v_add_u32 v{tq+1}, s{sT1}, v{cSn}",
            f"ds_read_b32 v{tq}, v{tq}", f"ds_read_b32 v{tq+1}, v{tq+1}"]
def fl_addr_read():
    return [f"s_lshl_b32 s{sT2}, s{sR}, 4", f"v_add_u32 v{FA}, s{sT2}, v{cFl}", f"ds_read_b64 {pr(FA)}, v{FA}"]
def q_addr_calc():
    return [EXLO, f"v_add_u32 v{aQe}, v{tq}, v{cQ}", f"v_add_u32 v{aQo}, v{tq+1}, v{cQ}", EXALL]
def q_read(b):
    return [f"ds_read_b64_tr_b16 {pr(B5+4*b)}, v{aQe} offset:{64*b}", f"ds_read_b64_tr_b16 {pr(B5+4*b+2)}, v{aQo} offset:{64*b}"]

def tile(A, cfg, sstar):
    for l in phaseA(ZA, ZB, 1): A(l)
    ins = [(2, read_idx()), (4, read_aux())]
    if sstar: ins += [(6, q_addr_read(1)), (10, fl_addr_read())]
    for l in weave(chain(ZA, 0, sstar), ins): A(l)
    for l in phaseA(ZB, ZA, 2): A(l)
    ins = [(1, ["s_waitcnt lgkmcnt(0)"] + calc_voff())]
    if sstar: ins += [(2, q_addr_calc()), (4, q_read(0)), (7, q_read(1)), (10, q_read(2))]
    for l in weave(chain(ZB, 1, sstar), ins): A(l)
    for l in phaseA(ZA, ZB, 3): A(l)
    ra = read_A()
    ins = [(0, ["s_waitcnt vmcnt(0)", ra[0], ra[1]]), (1, [ra[2]]), (2, [ra[3]]), (3, read_A5())]
    if sstar: ins += [(5, q_read(3))]
    ins += [(8, [f"v_add_u32 v{aX}, v{incX}, v{aX}"])]
    d = dma(cfg)
    ins += [(19, ["s_waitcnt lgkmcnt(0)"] + d[0:3]), (20, d[3:6]), (21, d[6:9]), (22, d[9:12])]
    for l in weave(chain(ZA, 2, sstar), ins): A(l)
    for l in phaseA(ZB, ZA, 0): A(l)
    for l in chain(ZB, 3, sstar): A(l)

F0 = T0
R0 = T0 + 8
def flush_calc(A, src):
    for b in range(4):
        A(f"v_rcp_f32 v{R0+2*b}, v{src+4*b+2}\nv_rcp_f32 v{R0+2*b+1}, v{src+4*b+3}")
    for b in range(4):
        A(f"v_max3_f32 v{dmax}, v{dmax}, v{src+4*b+2}, v{src+4*b+3}")
    for b in range(4):
        A(f"v_pk_mul_f32 {pr(F0+2*b)}, {pr(src+4*b)}, {pr(R0+2*b)}")
def flush_rows(A):
    for b in range(4):
        A(f"v_pk_fma_f32 {pr(chk)}, {pr(F0+2*b)}, 0, {pr(chk)} op_sel_hi:[1,0,1]")
    for p in range(2):
        A(f"v_cvt_pk_bf16_f32 v{R0+2*p}, v{F0+p}, v{F0+2+p}\nv_cvt_pk_bf16_f32 v{R0+2*p+1}, v{F0+4+p}, v{F0+6+p}")
        A(f"v_add_u32 v{FA+p}, v{FA+p}, v{cS}")
        A(f"ds_write_b64 v{FA+p}, {pr(R0+2*p)}")

def gen_p2(cfg):
    A = Asm()
    ST = 90
    stampn = [0]
    def stp():
        if cfg.get("stamps"):
            A(f"s_memrealtime s[90:91]\ns_waitcnt lgkmcnt(0)\nv_writelane_b32 v72, s90, {stampn[0]}\nv_writelane_b32 v73, s91, {stampn[0]}")
            stampn[0] += 1
    A("s_cmp_ge_u32 s2, 256\ns_cbranch_scc1 M_END")
    A("s_load_dwordx2 s[4:5], s[0:1], 0\ns_load_dwordx2 s[6:7], s[0:1], 64\ns_load_dwordx2 s[8:9], s[0:1], 80")
    A(f"v_and_b32 v{vLane}, 63, v0\nv_lshrrev_b32 v2, 6, v0")
    A(f"v_lshrrev_b32 v3, 4, v{vLane}")
    A(f"v_readfirstlane_b32 s{sW}, v2")
    A("v_lshlrev_b32 v3, 13, v3")
    A(f"s_mul_i32 s{sN0}, s2, {NPB}")
    A(f"s_lshl_b32 s{sT0}, s{sW}, 15\ns_lshl_b32 s{sT1}, s2, 2\ns_add_u32 s{sT0}, s{sT0}, s{sT1}\ns_add_u32 s{sT1}, s{sT0}, 4096")
    if cfg.get("stamps"): A("v_mov_b32 v72, 0\nv_mov_b32 v73, 0")
    stp()
    A("s_waitcnt lgkmcnt(0)")
    srd(A, SRD_OFFS, 8, 65537 * 4, WS_OFFS)
    ENT = 8
    for p in range(8):
        A(f"buffer_load_dword v{ENT+p}, v3, {sr(SRD_OFFS,4)}, s{sT0 if p < 4 else sT1} offen offset:{(p&3)*1024}")
    srd(A, SRD_X, 4, N * 128); srd(A, SRD_PREP, 8, 52224, WS_PREP)
    srd(A, SRD_KEYS, 8, E * 4, WS_KEYS); srd(A, SRD_EREC, 8, E * 8, WS_EREC); srd(A, SRD_OUT, 6, N * 128)
    XB, WB, QC = 96, 112, 144
    A(f"v_and_b32 v4, 31, v{vLane}\nv_lshrrev_b32 v5, 5, v{vLane}")
    A("v_lshlrev_b32 v6, 4, v5")
    A("v_lshl_add_u32 v7, v4, 7, v6")
    A(f"v_lshlrev_b32 v64, 4, v{vLane}\nv_lshlrev_b32 v65, 2, v{vLane}")
    A(f"s_lshr_b32 s{sT2}, s{sW}, 1\ns_lshl_b32 s{sT2}, s{sT2}, 5\ns_add_u32 s{sT3}, s{sT2}, s{sN0}\ns_lshl_b32 s{sT3}, s{sT3}, 7")
    for s in range(4):
        A(f"buffer_load_dwordx4 {vr(XB+4*s,4)}, v7, {sr(SRD_X,4)}, s{sT3} offen offset:{32*s}")
    A(f"s_and_b32 s{sT4}, s{sW}, 1\ns_lshl_b32 s{sT0}, s{sT4}, 13\ns_add_u32 s{sT0}, s{sT0}, {PR_WB}\ns_add_u32 s{sT1}, s{sT0}, 4096")
    for i in range(2):
        for s in range(4):
            A(f"buffer_load_dwordx4 {vr(WB+16*i+4*s,4)}, v64, {sr(SRD_PREP,4)}, s{sT0+i} offen offset:{1024*s}")
    A(f"s_lshl_b32 s{sT0}, s{sT4}, 8\ns_add_u32 s{sT0}, s{sT0}, {PR_B1}")
    for i in range(2):
        for q in range(4):
            A(f"buffer_load_dwordx4 {vr(QC+16*i+4*q,4)}, v6, {sr(SRD_PREP,4)}, s{sT0} offen offset:{128*i+32*q}")
    A(f"s_lshl_b32 s{sT0}, s{sW}, 11\ns_add_u32 m0, s{sT0}, {STG}\ns_nop 0")
    A(f"buffer_load_dwordx4 v64, {sr(SRD_PREP,4)}, s{sT0} offen lds\nbuffer_load_dwordx4 v64, {sr(SRD_PREP,4)}, s{sT0} offen offset:1024 lds")
    A(f"s_mul_i32 s{sT0}, s{sW}, {RS}\ns_add_u32 m0, s{sT0}, {QQ+100*RS}\ns_lshl_b32 s{sT0}, s{sW}, 8\ns_add_u32 s{sT0}, s{sT0}, {PR_WC}")
    A(f"buffer_load_dword v65, {sr(SRD_PREP,4)}, s{sT0} offen lds")
    A("v_lshlrev_b32 v66, 2, v0\nv_lshlrev_b32 v67, 4, v0")
    A("v_subrev_u32 v68, 4, v0\nv_lshrrev_b32 v69, 3, v68\nv_and_b32 v70, 3, v0")
    A("v_cmp_eq_u32 vcc, v69, v70\nv_and_b32 v68, 4, v68\nv_lshlrev_b32 v68, 2, v68")
    A("v_mov_b32 v69, 0x3f80\nv_lshlrev_b32 v69, v68, v69\nv_cndmask_b32 v69, 0, v69, vcc")
    A("ds_write_b32 v66, v69")
    A("v_cmp_gt_u32 vcc, 25, v0\nv_mov_b32 v80, 0\nv_mov_b32 v81, 0\nv_cndmask_b32 v69, 0, 8, vcc")
    A("v_cmp_gt_u32 vcc, 128, v0\ns_and_saveexec_b64 s[36:37], vcc\nds_write_b32 v66, v69 offset:2048\ns_mov_b64 exec, -1")
    A("v_mov_b32 v82, 0\nv_mov_b32 v83, 0\nv_mov_b32 v84, 0xffff\nv_mov_b32 v85, 0xffff\nv_mov_b32 v86, 0xffff\nv_mov_b32 v87, 0xffff")
    for i in range(2): A(f"ds_write_b128 v67, v[84:87] offset:{KEY+8192*i}")
    for i in range(4): A(f"ds_write_b128 v67, v[80:83] offset:{EE+8192*i}")
    A(f"v_and_b32 v88, 15, v{vLane}\nv_lshlrev_b32 v89, 3, v88\nv_lshlrev_b32 v88, 25, v88")
    A("v_add_u32 v90, 0x1000000, v88\nv_add_u32 v91, 0x2000000, v88")
    A("s_waitcnt lgkmcnt(0)\ns_barrier")
    stp()
    KEYR, ER, KO = 16, 32, 64
    A("s_waitcnt vmcnt(23)")
    stp()
    ldm = cfg.get("p2_recld", "")
    for p in range(8):
        A(f"v_mad_u32_u24 v{KO+p}, v{ENT+p}, 4, v89")
        A(f"v_cmpx_le_u32 {sr(MASK+4*p,2)}, v90, v{ENT+p}")
        A(f"buffer_load_dwordx2 {vr(KEYR+2*p,2)}, v{KO+p}, {sr(SRD_KEYS,4)}, 0 offen {ldm}")
        A(EXALL)
    for p in range(8):
        A(f"v_lshlrev_b32 v{KO+p}, 1, v{KO+p}")
        A(f"v_cmp_le_u32 {sr(MASK+4*p+2,2)}, v91, v{ENT+p}")
        A(f"s_mov_b64 exec, {sr(MASK+4*p,2)}")
        A(f"buffer_load_dwordx4 {vr(ER+4*p,4)}, v{KO+p}, {sr(SRD_EREC,4)}, 0 offen {ldm}")
        A(EXALL)
    A(f"v_max3_u32 v92, v{ENT}, v{ENT+1}, v{ENT+2}\nv_max3_u32 v92, v92, v{ENT+3}, v{ENT+4}\nv_max3_u32 v92, v92, v{ENT+5}, v{ENT+6}\nv_max_u32 v92, v92, v{ENT+7}")
    A(f"v_mov_b32 v93, {FBF}\nv_mov_b32 v94, 1")
    A(f"v_cmpx_le_u32 vcc, {hex(33<<24)}, v92\nds_write_b32 v93, v94\n{EXALL}")
    A("s_waitcnt vmcnt(16)\ns_nop 0")
    for i in range(2):
        for s in range(4):
            A(mfma(QC + 16 * i, WB + 16 * i + 4 * s, XB + 4 * s, QC + 16 * i))
    A(f"v_add_u32 v92, s{sT2}, v4\nv_mul_u32_u24 v93, {RS}, v92\nv_lshl_add_u32 v93, v5, 3, v93")
    A(f"s_lshl_b32 s{sT0}, s{sT4}, 7\ns_add_u32 s{sT0}, s{sT0}, {QQ}\nv_add_u32 v93, s{sT0}, v93")
    A(f"s_mov_b32 s{sT1}, {NEG_L2E}")
    A(f"v_cmp_gt_u32 vcc, 100, v92")
    A.nop(8)
    for i in range(2):
        if i == 1: A.nop(2)
        for q in range(4):
            r = QC + 16 * i + 4 * q
            for k in range(4): A(f"v_mul_f32 v{r+k}, s{sT1}, v{r+k}")
            A(f"v_cvt_pk_bf16_f32 v{r}, v{r}, v{r+1}\nv_cvt_pk_bf16_f32 v{r+1}, v{r+2}, v{r+3}")
    A("s_mov_b64 exec, vcc")
    for i in range(2):
        for q in range(4):
            A(f"ds_write_b64 v93, {pr(QC+16*i+4*q)} offset:{64*i+16*q}")
    A(EXALL)
    CA, RK = 96, 112
    A(f"s_lshl_b32 s{sT0}, s{sN0}, 2\ns_sub_u32 s{sT0}, {CNT}, s{sT0}\nv_mov_b32 v94, 16")
    for p in range(8):
        A(f"s_waitcnt vmcnt({15-p})")
        if p == 0: stp()
        for h in range(2):
            A(f"s_mov_b64 exec, {sr(MASK+4*p+2*h,2)}")
            A(f"v_mad_u32_u16 v{CA+2*p+h}, v{KEYR+2*p+h}, 4, s{sT0} op_sel:[1,0,0,0]")
            A(f"ds_add_rtn_u32 v{RK+2*p+h}, v{CA+2*p+h}, v94")
    A(EXALL)
    A("s_waitcnt lgkmcnt(0)\ns_barrier")
    stp()
    A(f"s_cmp_lg_u32 s{sW}, 0\ns_cbranch_scc1 M_NOSCHED")
    a, b = 128, 129
    A(f"v_lshlrev_b32 v65, 2, v{vLane}")
    A(f"ds_read2st64_b32 v[128:129], v65 offset0:{CNT//256} offset1:{CNT//256+1}")
    A(f"s_mov_b32 s{sT0}, -1\ns_mov_b32 s{sT1}, 15\nv_mov_b32 v130, 1")
    A(f"v_mul_u32_u24 v140, {RS}, v{vLane}\nv_add_u32 v141, {64*RS}, v140")
    A("s_waitcnt lgkmcnt(0)")
    for i in range(2):
        A(f"v_lshrrev_b32 v{128+i}, 4, v{128+i}\nv_min_u32 v{132+i}, 63, v{128+i}\nv_sub_u32 v{132+i}, 63, v{132+i}\nv_lshlrev_b32 v{132+i}, 2, v{132+i}")
    A(f"ds_add_rtn_u32 v134, v132, v130 offset:{HIST}")
    A(f"s_mov_b64 exec, {sr(sT0,2)}\nds_add_rtn_u32 v135, v133, v130 offset:{HIST}\n{EXALL}")
    A(f"ds_read_b32 v136, v65 offset:{HIST}")
    A("s_waitcnt lgkmcnt(0)\nv_mov_b32 v137, v136")
    wave_scan(A, 137)
    A("v_sub_u32 v137, v137, v136")
    A("ds_bpermute_b32 v138, v132, v137\nds_bpermute_b32 v139, v133, v137")
    A("s_waitcnt lgkmcnt(0)")
    for i in range(2):
        A(f"v_add_u32 v{138+i}, v{138+i}, v{134+i}")
        A(f"v_and_b32 v{142+i}, -4, v{138+i}\nv_lshlrev_b32 v{144+i}, 2, v{138+i}")
    A(f"ds_max_u32 v142, v128 offset:{LRUN}\nds_write_b32 v144, v140 offset:{SNODE}")
    A(f"s_mov_b64 exec, {sr(sT0,2)}\nds_max_u32 v143, v129 offset:{LRUN}\nds_write_b32 v145, v141 offset:{SNODE}\n{EXALL}")
    A(f"ds_read_b32 v136, v65 offset:{LRUN}")
    for i in range(2):
        A(f"v_and_b32 v{146+i}, 7, v{138+i}\nv_lshlrev_b32 v{146+i}, 20, v{146+i}\nv_add_u32 v{146+i}, 0x100000, v{146+i}")
        A(f"v_and_b32 v{144+i}, 12, v{144+i}\nv_or_b32 v{146+i}, v{146+i}, v{144+i}")
    A("s_waitcnt lgkmcnt(0)\nv_mov_b32 v137, v136\nv_mov_b32 v148, v136")
    wave_scan(A, 137, other=[(148, "v_max_u32")])
    A("v_sub_u32 v137, v137, v136")
    A("ds_bpermute_b32 v138, v142, v137\nds_bpermute_b32 v139, v143, v137")
    A(f"v_cmp_gt_u32 vcc, 26, v{vLane}\nv_mov_b32 v149, 0x7fffffff\nv_mov_b32 v150, {LMAXA}\nv_cndmask_b32 v137, v149, v137, vcc")
    A(f"ds_write_b32 v65, v137 offset:{START}")
    A(f"s_mov_b32 s{sT2}, 0\ns_brev_b32 s{sT3}, 1\ns_mov_b64 exec, {sr(sT2,2)}\nds_write_b32 v150, v148\n{EXALL}")
    A("s_waitcnt lgkmcnt(2)")
    for i in range(2):
        A(f"v_lshl_add_u32 v{146+i}, v{138+i}, 4, v{146+i}")
    A(f"ds_write2st64_b32 v65, v146, v147 offset0:{INFO//256} offset1:{INFO//256+1}")
    A.label("M_NOSCHED")
    A(f"v_lshlrev_b32 v64, 4, v{vLane}\nv_add_u32 v64, {STG}, v64")
    A(f"s_cmp_lg_u32 s{sW}, 0\ns_cbranch_scc1 M_WFIRST")
    A("s_waitcnt lgkmcnt(0)\ns_barrier")
    for i in range(16): A(f"ds_read_b128 {vr(W0+4*i,4)}, v64 offset:{1024*i}")
    A("s_branch M_WDONE")
    A.label("M_WFIRST")
    for i in range(16): A(f"ds_read_b128 {vr(W0+4*i,4)}, v64 offset:{1024*i}")
    A("s_waitcnt lgkmcnt(0)\ns_barrier")
    A.label("M_WDONE")
    stp()
    IN = 128
    A(f"v_lshlrev_b32 v65, 2, v{vLane}\nv_mov_b32 v66, {FBF}")
    A(f"ds_read_b32 v70, v65 offset:{START}\nds_read_b64 v[68:69], v66")
    for k in range(16):
        A(f"s_mov_b64 exec, {sr(MASK+2*k,2)}\nds_read_b32 v{IN+k}, v{CA+k} offset:{INFO-CNT}")
    A(EXALL)
    A("s_waitcnt lgkmcnt(15)")
    A(f"v_readlane_b32 s{sT0}, v70, 25\nv_readfirstlane_b32 s{sT1}, v68\nv_readfirstlane_b32 s{sT2}, v69")
    A(f"s_mov_b32 s{sT5}, 0xffff")
    A(f"s_add_u32 s{sT0}, s{sT0}, 7\ns_lshr_b32 s{sT0}, s{sT0}, 3")
    A(f"s_cmp_gt_u32 s{sT0}, {CAPT}\ns_cbranch_scc1 M_FALLBACK")
    A(f"s_cmp_lg_u32 s{sT1}, 0\ns_cbranch_scc1 M_FALLBACK")
    A("s_waitcnt vmcnt(0) lgkmcnt(0)")
    for k in range(16):
        p, h = k >> 1, k & 1
        A(f"s_mov_b64 exec, {sr(MASK+2*k,2)}")
        A(f"v_mad_u32_u16 v{RK+k}, v{IN+k}, 1, v{RK+k}")
        A(f"v_bfi_b32 v{KEYR+k}, s{sT5}, v{KEYR+k}, v{IN+k}")
        A(f"ds_write_b32 v{RK+k}, v{KEYR+k} offset:{KEY}")
        A(f"v_lshlrev_b32 v{CA+k}, 1, v{RK+k}")
        A(f"ds_write_b64 v{CA+k}, {pr(ER+4*p+2*h)} offset:{EE}")
    A(EXALL)
    A(f"s_lshr_b32 s{sT1}, s{sT0}, 3\ns_and_b32 s{sT3}, s{sT0}, 7")
    A(f"s_add_u32 s{sT2}, s{sT2}, 7\ns_lshr_b32 s{sT2}, s{sT2}, 3")
    A(f"s_cmp_lt_u32 s{sT1}, s{sT2}\ns_cselect_b32 s{sT3}, 0, s{sT3}\ns_max_u32 s{sT1}, s{sT1}, s{sT2}")
    A(f"s_mul_i32 s{sG0}, s{sW}, s{sT1}\ns_min_u32 s{sT4}, s{sW}, s{sT3}\ns_add_u32 s{sG0}, s{sG0}, s{sT4}")
    A(f"s_add_u32 s{sG1}, s{sG0}, s{sT1}\ns_cmp_lt_u32 s{sW}, s{sT3}\ns_addc_u32 s{sG1}, s{sG1}, 0\ns_min_u32 s{sG1}, s{sG1}, s{sT0}")
    A(f"s_min_u32 s{sG0}, s{sG0}, s{sT0}")
    A(f"v_mov_b32 v{vStart}, v70")
    loop_consts(A)
    A(f"s_lshl_b32 s{sT0}, s{sG0}, 7\nv_add_u32 v{aIdx}, s{sT0}, v{aIdx}\nv_mad_u32_u24 v{aX}, v{incX}, s{sG0}, v{aX}")
    A(f"s_lshl_b32 s{sG0}, s{sG0}, 3\ns_lshl_b32 s{sG1}, s{sG1}, 3")
    A(f"v_cmp_ge_u32 vcc, s{sG0}, v{vStart}")
    A(f"v_mov_b32 v{dmax}, 0\nv_mov_b64 {pr(chk)}, 0")
    A(f"s_bcnt1_i32_b64 s{sT0}, vcc\ns_sub_u32 s{sR}, s{sT0}, 1")
    A(f"v_readlane_b32 s{sBnd}, v{vStart}, s{sT0}\nv_readlane_b32 s{sT1}, v{vStart}, s{sR}")
    for b_ in range(4):
        A(f"v_mov_b64 {pr(ND+4*b_)}, 0\nv_mov_b64 {pr(ND+4*b_+2)}, {sr(sOne,2)}")
    A(f"s_cmp_eq_u32 s{sT1}, s{sG0}\ns_cselect_b32 s{sHead}, 1, 0")
    for l in q_addr_read(0): A(l)
    A("s_waitcnt lgkmcnt(0)\ns_barrier")
    stp()
    A(f"s_cmp_ge_u32 s{sG0}, s{sG1}\ns_cbranch_scc1 M_LOOPDONE")
    for l in read_idx() + read_aux() + q_addr_calc(): A(l)
    A("s_waitcnt lgkmcnt(0)")
    for l in calc_voff() + dma(cfg) + read_idx(): A(l)
    for b_ in range(4):
        for l in q_read(b_): A(l)
    for l in read_A5(): A(l)
    A(f"v_add_u32 v{aX}, v{incX}, v{aX}")
    A("s_waitcnt vmcnt(0)")
    for l in read_A(): A(l)
    A("s_waitcnt lgkmcnt(4)")
    for l in calc_voff(): A(l)
    A("s_waitcnt lgkmcnt(0)")
    for l in dma(cfg): A(l)
    for l in block_mfmas(ZA, 0): A(l)
    A.nop(10)
    stp()
    A(".p2align 6") if cfg.get("align", 1) else None
    A.label("M_LOOP")
    A(f"s_sub_u32 s{sS}, s{sBnd}, s{sG0}\ns_cmp_le_u32 s{sS}, 8\ns_cbranch_scc1 M_DISP")
    tile(A, cfg, 0)
    A.label("M_NEXT")
    A(f"s_add_u32 s{sG0}, s{sG0}, 8\ns_cmp_lt_u32 s{sG0}, s{sG1}\ns_cbranch_scc1 M_LOOP")
    A("s_branch M_LOOPEXIT")
    A.label("M_DISP")
    A(f"s_cmp_gt_u32 s{sS}, 4\ns_cbranch_scc1 M_DISP58")
    A(f"s_cmp_eq_u32 s{sS}, 1\ns_cbranch_scc1 M_V1\ns_cmp_eq_u32 s{sS}, 2\ns_cbranch_scc1 M_V2\ns_cmp_eq_u32 s{sS}, 3\ns_cbranch_scc1 M_V3\ns_branch M_V4")
    A.label("M_DISP58")
    A(f"s_cmp_eq_u32 s{sS}, 5\ns_cbranch_scc1 M_V5\ns_cmp_eq_u32 s{sS}, 6\ns_cbranch_scc1 M_V6\ns_cmp_eq_u32 s{sS}, 7\ns_cbranch_scc1 M_V7\ns_branch M_V8")
    for v in range(1, 9):
        A(".p2align 6") if cfg.get("align", 1) else None
        A.label(f"M_V{v}")
        tile(A, cfg, v)
        A("s_branch M_FLUSH")
    A.label("M_FLUSH")
    flush_calc(A, SND)
    A(f"s_add_u32 s{sR}, s{sR}, 1\ns_add_u32 s{sT0}, s{sR}, 1")
    A(f"v_readlane_b32 s{sBnd}, v{vStart}, s{sT0}")
    A(f"s_cmp_eq_u32 s{sHead}, 0\ns_cbranch_scc1 M_FLUSHT")
    flush_rows(A)
    A("s_branch M_NEXT")
    A.label("M_FLUSHT")
    A(f"ds_write_b128 v{aT}, {vr(F0,4)}\nds_write_b128 v{aT}, {vr(F0+4,4)} offset:16")
    A(f"s_lshl_b32 s{sT0}, s{sW}, 2\nv_mov_b32 v{vtmp}, s{sT0}\nv_mov_b32 v{vtmp+1}, 1\ns_mov_b32 s{sHead}, 1")
    A(f"ds_write_b32 v{vtmp}, v{vtmp+1} offset:{TFLG}")
    A("s_waitcnt lgkmcnt(0)")
    A("s_branch M_NEXT")
    A.label("M_LOOPEXIT")
    stp()
    A(f"s_cmp_ge_u32 s{sR}, 25\ns_cbranch_scc1 M_LOOPDONE")
    A(f"v_readlane_b32 s{sT1}, v{vStart}, s{sR}")
    for l in fl_addr_read(): A(l)
    A(f"s_cmp_ge_u32 s{sT1}, s{sG1}\ns_cbranch_scc1 M_LOOPDONE")
    flush_calc(A, ND)
    A(f"s_lshl_b32 s{sT0}, s{sW}, 2\nv_mov_b32 v{vtmp}, s{sT0}")
    A.label("M_TWAIT")
    A(f"ds_read_b32 v{vtmp+1}, v{vtmp} offset:{TFLG+4}")
    A(f"ds_read_b128 {vr(R0,4)}, v{aT} offset:2048\nds_read_b128 {vr(R0+4,4)}, v{aT} offset:2064")
    A("s_waitcnt lgkmcnt(0)")
    A(f"v_readfirstlane_b32 s{sT0}, v{vtmp+1}\ns_cmp_eq_u32 s{sT0}, 0\ns_cbranch_scc1 M_TWAIT")
    for b_ in range(4): A(f"v_pk_add_f32 {pr(F0+2*b_)}, {pr(F0+2*b_)}, {pr(R0+2*b_)}")
    flush_rows(A)
    A.label("M_LOOPDONE")
    A(f"v_add_f32 v{chk}, v{chk}, v{chk+1}\nv_add_f32 v{chk}, v{chk}, v{dmax}\nv_mov_b32 v{vtmp}, {FBF}\nv_mov_b32 v{vtmp+1}, 1")
    A(f"v_cmpx_nle_f32 vcc, v{chk}, v{vtmp+2}") if False else None
    A(f"s_mov_b32 s{sT0}, 0x7b800000")
    A(f"v_cmpx_ngt_f32 vcc, s{sT0}, v{chk}\nds_write_b32 v{vtmp}, v{vtmp+1}\n{EXALL}")
    A("s_waitcnt vmcnt(0)")
    epi_loads(A)
    A("s_waitcnt lgkmcnt(0)\ns_barrier")
    stp()
    A(f"ds_read_b32 v{vtmp+1}, v{vtmp}")
    epi_reads(A)
    A("s_waitcnt lgkmcnt(9)")
    A(f"v_readfirstlane_b32 s{sT0}, v{vtmp+1}\ns_cmp_lg_u32 s{sT0}, 0\ns_cbranch_scc1 M_FALLBACK2")
    A.label("M_EPI")
    epi_compute(A, cfg)
    if cfg.get("stamps"):
        stp()
        A("s_waitcnt vmcnt(0)")
        stp()
        srd(A, 92, 8, 0x100000, WS_STAMP2)
        A(f"s_lshl_b32 s96, s2, 3\ns_add_u32 s96, s96, s{sW}\ns_mul_i32 s96, s96, {stampn[0]*8}")
        A(f"v_lshlrev_b32 v70, 3, v{vLane}\nv_cmpx_gt_u32 vcc, {stampn[0]}, v{vLane}")
        A("buffer_store_dwordx2 v[72:73], v70, s[92:95], s96 offen")
        print("P2 stamps:", stampn[0])
    A("s_endpgm")
    fallback(A, cfg)
    A.label("M_END")
    A("s_endpgm")
    return A

def loop_consts(A):
    t = 144
    L = vLane
    A(f"s_mov_b32 s{sLo}, -1\ns_mov_b32 s{sLo+1}, 0\ns_mov_b32 s{sHi}, 0\ns_mov_b32 s{sHi+1}, -1\ns_mov_b32 s{sOne}, 1.0\ns_mov_b32 s{sOne+1}, 1.0\ns_movk_i32 s{sK128}, 128")
    A(f"s_lshl_b32 s{sStg}, s{sW}, 12\ns_add_u32 s{sStg}, s{sStg}, {STG}")
    A(f"v_bfe_u32 v{t}, v{L}, 3, 2\nv_bfe_u32 v{t+1}, v{L}, 1, 1\nv_lshl_or_b32 v{t+1}, v{t}, 1, v{t+1}")
    A(f"v_bfe_u32 v{t+2}, v{L}, 2, 1\nv_and_b32 v{t+3}, 1, v{L}\nv_lshl_or_b32 v{t+2}, v{t+2}, 1, v{t+3}")
    A(f"v_lshl_or_b32 v{t+4}, v{t}, 1, v{t+3}")
    A(f"v_lshrrev_b32 v{t+5}, 5, v{L}")
    A(f"v_lshl_add_u32 v{t+6}, v{t+2}, 3, v{t+1}\nv_lshlrev_b32 v{t+6}, 7, v{t+6}\nv_add_u32 v{t+6}, s{sStg}, v{t+6}")
    for s in range(4):
        A(f"v_or_b32 v{t+7}, {2*s}, v{t+5}\nv_xor_b32 v{t+7}, v{t+7}, v{t+4}\nv_lshl_add_u32 v{aA+s}, v{t+7}, 4, v{t+6}")
    A(f"v_lshl_add_u32 v{t+7}, v{t+1}, 2, v{t+2}\nv_lshlrev_b32 v{t+7}, 2, v{t+7}\nv_lshlrev_b32 v{t+7}, v{t+5}, v{t+7}")
    A(f"v_mov_b32 v{t+8}, {EE-KEY-2}\nv_mad_u32_u24 v{t+7}, v{t+5}, v{t+8}, v{t+7}\nv_add_u32 v{aX}, {KEY+2}, v{t+7}")
    A(f"v_mov_b32 v{incX}, 128\nv_lshlrev_b32 v{incX}, v{t+5}, v{incX}")
    A(f"v_lshrrev_b32 v{t+7}, 3, v{L}\nv_lshlrev_b32 v{aIdx}, 4, v{t+7}\nv_add_u32 v{aIdx}, {KEY}, v{aIdx}")
    A(f"v_and_b32 v{t+7}, 6, v{t+7}\nv_and_b32 v{t+8}, 7, v{L}\nv_xor_b32 v{t+7}, v{t+7}, v{t+8}\nv_lshlrev_b32 v{chE}, 4, v{t+7}\nv_xor_b32 v{chO}, 16, v{chE}")
    A(f"v_bfe_u32 v{t+7}, v{L}, 4, 1\nv_and_b32 v{t+8}, 3, v{L}\nv_lshlrev_b32 v{t+7}, 5, v{t+7}\nv_lshl_add_u32 v{t+7}, v{t+8}, 3, v{t+7}\nv_add_u32 v{cQ}, {QQ}, v{t+7}")
    A(f"v_bfe_u32 v{t+7}, v{L}, 2, 2\nv_mul_u32_u24 v{t+8}, {RS}, v{t+7}\nv_add_u32 v{t+8}, v{t+8}, v{cQ}")
    A(f"v_add_u32 v{aQe}, {100*RS}, v{t+8}\nv_add_u32 v{aQo}, {104*RS}, v{t+8}")
    A(f"v_lshlrev_b32 v{cSn}, 2, v{t+7}\nv_add_u32 v{cSn}, {SNODE}, v{cSn}")
    A(f"v_lshlrev_b32 v{cFl}, 3, v{t+5}\nv_add_u32 v{cFl}, {SNODE}, v{cFl}")
    A(f"v_and_b32 v{t+7}, 31, v{L}\nv_lshlrev_b32 v{cS}, 3, v{t+7}\nv_add_u32 v{cS}, {SS}, v{cS}")
    A(f"s_lshl_b32 s{sT4}, s{sW}, 11\ns_add_u32 s{sT4}, s{sT4}, {TT}\nv_lshlrev_b32 v{aT}, 5, v{L}\nv_add_u32 v{aT}, s{sT4}, v{aT}")

W2R, B2R, SFR, OACC = 76, 108, 124, 156
def epi_loads(A):
    L = vLane
    A(f"v_lshlrev_b32 v40, 4, v{L}\nv_lshrrev_b32 v41, 5, v{L}\nv_lshlrev_b32 v42, 4, v41")
    A(f"s_and_b32 s{sT4}, s{sW}, 1\ns_lshl_b32 s{sT0}, s{sT4}, 13\ns_add_u32 s{sT0}, s{sT0}, {PR_W2}\ns_add_u32 s{sT1}, s{sT0}, 4096")
    for s in range(8):
        A(f"buffer_load_dwordx4 {vr(W2R+4*s,4)}, v40, {sr(SRD_PREP,4)}, s{sT0+(s>>2)} offen offset:{1024*(s&3)}")
    A(f"s_lshl_b32 s{sT0}, s{sT4}, 7\ns_add_u32 s{sT0}, s{sT0}, {PR_B2}")
    for q in range(4):
        A(f"buffer_load_dwordx4 {vr(B2R+4*q,4)}, v42, {sr(SRD_PREP,4)}, s{sT0} offen offset:{32*q}")
    A(f"s_lshr_b32 s{sT2}, s{sW}, 1\ns_lshl_b32 s{sT2}, s{sT2}, 5\nv_and_b32 v43, 31, v{L}\nv_add_u32 v43, s{sT2}, v43")
    A(f"v_min_u32 v44, 99, v43\nv_lshlrev_b32 v45, 2, v44\nv_mul_u32_u24 v44, {RS}, v44\nv_add_u32 v44, v44, v42\nv_add_u32 v44, {SS}, v44")
    A(f"v_lshlrev_b32 v46, 7, v43\nv_lshl_add_u32 v46, v41, 3, v46")
    A(f"s_lshl_b32 s{sT3}, s{sN0}, 7\ns_lshl_b32 s{sT4}, s{sT4}, 6\ns_add_u32 s{sT3}, s{sT3}, s{sT4}")
def epi_reads(A):
    A(f"ds_read_b32 v47, v45 offset:{CNT}")
    for s in range(8): A(f"ds_read_b128 {vr(SFR+4*s,4)}, v44 offset:{32*s}")
def epi_compute(A, cfg):
    A("s_waitcnt vmcnt(0)")
    for s in range(8):
        A(f"s_waitcnt lgkmcnt({7-s})")
        A(mfma(OACC, W2R + 4 * s, SFR + 4 * s, None if s == 0 else OACC))
    A(f"v_lshrrev_b32 v47, 4, v47\nv_cvt_f32_u32 v47, v47\ns_mov_b32 s{sT0}, 0xbf317218")
    for r in range(16): A(f"v_mul_f32 v{B2R+r}, v47, v{B2R+r}")
    A(f"v_cmp_gt_u32 vcc, {NPB}, v43")
    for q in range(4):
        for k in range(4): A(f"v_fmac_f32 v{B2R+4*q+k}, s{sT0}, v{OACC+4*q+k}")
        A(f"v_cvt_pk_bf16_f32 v{B2R+4*q}, v{B2R+4*q}, v{B2R+4*q+1}\nv_cvt_pk_bf16_f32 v{B2R+4*q+1}, v{B2R+4*q+2}, v{B2R+4*q+3}")
    A("s_mov_b64 exec, vcc")
    for q in range(4):
        A(f"buffer_store_dwordx2 {pr(B2R+4*q)}, v46, {sr(SRD_OUT,4)}, s{sT3} offen offset:{16*q}")
    A(EXALL)

def fallback(A, cfg):
    L = vLane
    A.label("M_FALLBACK")
    A.label("M_FALLBACK2")
    A("s_waitcnt vmcnt(0) lgkmcnt(0)\ns_barrier")
    loop_consts(A)
    A("v_lshlrev_b32 v40, 4, v0\nv_mov_b64 v[44:45], 0\nv_mov_b64 v[46:47], 0\nv_lshlrev_b32 v41, 2, v0")
    for i in range(6): A(f"ds_write_b128 v40, v[44:47] offset:{SF+8192*i}")
    A(f"v_cmpx_gt_u32 vcc, 128, v0\nds_write_b128 v40, v[44:47] offset:{SF+8192*6}\nds_write_b32 v41, v44 offset:{CNT}\n{EXALL}")
    for b_ in range(4):
        for l in q_read(b_): A(l)
    A(f"v_and_b32 v40, 31, v{L}\nv_lshrrev_b32 v41, 5, v{L}\nv_lshlrev_b32 v42, 4, v41")
    A(f"v_lshlrev_b32 v43, 1, v40\nv_add_u32 v43, {QQ}, v43\nv_lshlrev_b32 v44, 2, v40\nv_add_u32 v44, {SF}, v44")
    A("s_waitcnt lgkmcnt(0)\ns_barrier")
    sC, sCe, sP, sEnd = sG0, sG1, sR, sBnd
    A(f"s_lshl_b32 s{sC}, s{sW}, 5\ns_add_u32 s{sCe}, s{sC}, 32")
    A.label("F_SEG")
    A(f"s_lshl_b32 s{sT0}, s{sC}, 8\ns_add_u32 s{sT0}, s{sT0}, s2\ns_lshl_b32 s{sT0}, s{sT0}, 2\nv_mov_b32 v46, s{sT0}")
    A(f"buffer_load_dwordx2 v[46:47], v46, {sr(SRD_OFFS,4)}, 0 offen\ns_waitcnt vmcnt(0)")
    A(f"v_readfirstlane_b32 s{sP}, v46\nv_readfirstlane_b32 s{sEnd}, v47")
    A(f"s_and_b32 s{sP}, s{sP}, 0xffffff\ns_and_b32 s{sEnd}, s{sEnd}, 0xffffff")
    A.label("F_PIECE")
    A(f"s_cmp_ge_u32 s{sP}, s{sEnd}\ns_cbranch_scc1 F_SEGEND")
    A(f"v_add_u32 v46, s{sP}, v40\nv_cmp_gt_u32 {sr(MASK,2)}, s{sEnd}, v46\nv_lshlrev_b32 v47, 2, v46\nv_lshlrev_b32 v46, 3, v46")
    A(f"buffer_load_dword v48, v47, {sr(SRD_KEYS,4)}, 0 offen\nbuffer_load_dwordx2 {pr(A5)}, v46, {sr(SRD_EREC,4)}, 0 offen")
    A("s_waitcnt vmcnt(0)")
    A(f"v_and_b32 v49, 0xffff, v48\nv_lshrrev_b32 v48, 16, v48\nv_subrev_u32 v48, s{sN0}, v48\nv_mov_b32 v50, 99\nv_mov_b32 v51, 0xffff")
    A(f"v_cndmask_b32 v48, v50, v48, {sr(MASK,2)}\nv_cndmask_b32 v49, v51, v49, {sr(MASK,2)}")
    A(f"v_lshl_add_u32 v49, v49, 7, v42")
    for s in range(4): A(f"buffer_load_dwordx4 {vr(A0+4*s,4)}, v49, {sr(SRD_X,4)}, 0 offen offset:{32*s}")
    A(f"s_and_b64 {sr(MASK+2,2)}, {sr(MASK,2)}, {sr(sHi,2)}\ns_and_b64 {sr(MASK+4,2)}, {sr(MASK,2)}, {sr(sLo,2)}")
    A(f"v_cndmask_b32 v{A5}, 0, v{A5}, {sr(MASK+2,2)}\nv_cndmask_b32 v{A5+1}, 0, v{A5+1}, {sr(MASK+2,2)}")
    A(f"v_mov_b64 {pr(A5+2)}, {pr(A5)}")
    A(f"v_lshlrev_b32 v50, 2, v48\nv_mov_b32 v51, 16\ns_mov_b64 exec, {sr(MASK+4,2)}\nds_add_u32 v50, v51 offset:{CNT}\n{EXALL}")
    QA, SA = 76, 92
    for r in range(16):
        A(f"ds_bpermute_b32 v{QA+r}, v42, v48 offset:{((r>>2)*8+(r&3))*4}")
    A("s_waitcnt lgkmcnt(0)")
    A(f"s_movk_i32 s{sT0}, {RS}")
    for r in range(16):
        A(f"v_lshl_add_u32 v{SA+r}, v{QA+r}, 9, v44\nv_mad_u32_u24 v{QA+r}, v{QA+r}, s{sT0}, v43")
    A("s_waitcnt vmcnt(0)")
    for b_ in range(4):
        for l in block_mfmas(ZA, b_): A(l)
        for r in range(16): A(f"ds_read_u16 v{T0+r}, v{QA+r} offset:{64*b_}")
        A("s_waitcnt lgkmcnt(0)")
        for r in range(16):
            A(f"v_lshlrev_b32 v{T0+r}, 16, v{T0+r}\nv_add_f32 v{ZB+r}, v{ZA+r}, v{T0+r}\nv_exp_f32 v{T0+r}, v{ZB+r}")
        for r in range(16): A(f"v_add_f32 v{T0+r}, 1.0, v{T0+r}")
        for r in range(16): A(f"v_rcp_f32 v{T0+r}, v{T0+r}")
        for r in range(16): A(f"v_mul_f32 v{ZB+r}, v{ZB+r}, v{T0+r}")
        for r in range(16): A(f"ds_add_f32 v{SA+r}, v{ZB+r} offset:{128*b_}")
        A("s_waitcnt lgkmcnt(0)")
    A(f"s_add_u32 s{sP}, s{sP}, 32\ns_branch F_PIECE")
    A.label("F_SEGEND")
    A(f"s_add_u32 s{sC}, s{sC}, 1\ns_cmp_lt_u32 s{sC}, s{sCe}\ns_cbranch_scc1 F_SEG")
    A("s_waitcnt vmcnt(0) lgkmcnt(0)\ns_barrier")
    for i in range(7):
        A(f"v_lshrrev_b32 v46, 5, v0\nv_add_u32 v46, {16*i}, v46\nv_min_u32 v46, 99, v46")
        A(f"v_lshl_add_u32 v47, v46, 9, v44\nv_mul_u32_u24 v46, {RS}, v46\nv_add_u32 v46, v46, v{cS}")
        A("ds_read2_b32 v[48:49], v47 offset0:0 offset1:32\nds_read2_b32 v[50:51], v47 offset0:64 offset1:96\ns_waitcnt lgkmcnt(0)")
        A("v_cvt_pk_bf16_f32 v48, v48, v49\nv_cvt_pk_bf16_f32 v49, v50, v51\nds_write_b64 v46, v[48:49]\ns_waitcnt lgkmcnt(0)")
    epi_loads(A)
    A("s_waitcnt lgkmcnt(0)\ns_barrier")
    epi_reads(A)
    A("s_branch M_EPI")
```

```python
import sys, json
from asmlib import *
import p1
HEAD = open("standalone__edge_featured_mpnn_mpnn__graph.s.ref").read().split("; Override launch")[0]
def kernel(name, A, vgpr, sgpr, extra=""):
    code = f".globl {name}\n.p2align 8\n.type {name},@function\n{name}:\n" + A.text()
    acc = (vgpr + 3) // 4 * 4
    desc = f""".p2align 6
.amdhsa_kernel {name}
  .amdhsa_next_free_vgpr {vgpr}
  .amdhsa_next_free_sgpr {sgpr}
  .amdhsa_accum_offset {acc}
  .amdhsa_group_segment_fixed_size 0
  .amdhsa_kernarg_size 88
  .amdhsa_user_sgpr_count 2
  .amdhsa_user_sgpr_kernarg_segment_ptr 1
  .amdhsa_system_sgpr_workgroup_id_x 1
{extra}.end_amdhsa_kernel
"""
    return code, desc
def build(cfg, outfile):
    ks = []
    A1 = p1.gen_p1(cfg); lint(A1.lines)
    ks.append(("mpnn_part_kernel", A1, 56, 96, (256, p1.P1_THREADS, p1.P1_LDS)))
    if not cfg.get("p1only"):
        import p2
        A2 = p2.gen_p2(cfg); lint(A2.lines)
        ks.append(("mpnn_main_kernel", A2, 256, 102, (256, 512, p2.LDS_TOTAL)))
    s = HEAD
    for n, A, v, sg, (g, b, l) in ks:
        s += f"; @launch kernel={n} grid=({g},1,1) block=({b},1,1) lds={l}\n"
    s += '.amdgcn_target "amdgcn-amd-amdhsa--gfx950"\n.text\n'
    descs = ""
    for n, A, v, sg, _ in ks:
        c, d = kernel(n, A, v, sg); s += c; descs += d
    s += '.section .rodata,"a"\n' + descs
    open(outfile, "w").write(s)
if __name__ == "__main__":
    cfg = json.loads(sys.argv[2]) if len(sys.argv) > 2 else {}
    build(cfg, sys.argv[1])
```

```python
from asmlib import *
from layout import *
from p1 import srd, wave_scan, stamp, stamp_store, NEG_L2E
E = 800000; N = 25000
PAT = 0; TFLG = 160; FBF = 192; LMAXA = 196
CNT = 256; INFO = 768; SNODE = 1280; HIST = 1792; LRUN = 2048; START = 2304
KEY = 2560; CAPALL = 128; CAPT = 126
EE = KEY + CAPALL * 128
TT = EE + CAPALL * 256
QQ = TT + 16384
RS = 272
SS = QQ + 108 * RS
STG = SS + 100 * RS
LDS_TOTAL = STG + 32768
assert STG % 256 == 0 and LDS_TOTAL <= 163840
SF = KEY
PR_WA, PR_WB, PR_W2, PR_WC, PR_B1, PR_B2 = 0, 16384, 32768, 49152, 51200, 51712
W0 = 192; B5 = 176; A0 = 156; A5 = 172; ZA = 124; ZB = 140; T0 = 108; ND = 92; SND = 76; U = 74
vLane = 1
aA = 2
aX = 6; incX = 7
def Wf(b, s): return W0 + (b * 4 + s) * 4
aIdx = 8; chE = 9; chO = 10; vAux = 11; IDX = 12
vStart = 16; dmax = 17; chk = 18
cQ = 20; aQe = 21; aQo = 22; cSn = 23; cFl = 24; cS = 25; FA = 26
tq = 28
aT = 30; vtmp = 32
sW = 3
SRD_X, SRD_OFFS, SRD_KEYS, SRD_EREC, SRD_PREP, SRD_OUT = 12, 16, 20, 24, 28, 32
MASK = 36
sG0, sG1, sR, sBnd, sHead, sStg, sS, sK128 = 68, 69, 70, 71, 72, 73, 74, 75
sLo, sHi, sOne = 76, 78, 80
sT0, sT1, sT2, sT3, sT4, sT5 = 82, 83, 84, 85, 86, 87
sN0 = 88
STAMP0 = 36

def pr(r): return f"v[{r}:{r+1}]"
def pkfma(d, a, b, c): return f"v_pk_fma_f32 {pr(d)}, {pr(a)}, {pr(b)}, {pr(c)}"
def mfma(d, a, b, c):
    cs = "0" if c is None else vr(c, 16)
    return f"v_mfma_f32_32x32x16_bf16 {vr(d,16)}, {vr(a,4)}, {vr(b,4)}, {cs}"

def block_mfmas(z, b):
    L = [mfma(z, A0 + 4 * s, Wf(b, s), None if s == 0 else z) for s in range(4)]
    L.append(mfma(z, A5, B5 + 4 * b, z))
    return L

CFG = {}
def phaseA(zc, zn, bn):
    ms = block_mfmas(zn, bn)
    x = CFG.get("exp_mfma")
    if x == "none": ms = ["s_nop 0"] * 5
    if x == "only5": ms = ["s_nop 0"] * 4 + [mfma(zn, A5, B5 + 4 * bn, None)]
    if x == "all5": ms = [mfma(zn, A5, B5 + 4 * bn, None)] * 5
    out = []
    for i in range(16):
        if i % 3 == 0 and i // 3 < 5: out.append(ms[i // 3])
        if not CFG.get("exp_noexp"): out.append(f"v_exp_f32 v{T0+i}, v{zc+i}")
    return out

def chain(z, b, sstar):
    Nr, Dr = ND + 4 * b, ND + 4 * b + 2
    SNr, SDr = SND + 4 * b, SND + 4 * b + 2
    out = []
    ncur = Nr
    for m in range(8):
        t = T0 + 2 * m; zz = z + 2 * m
        if sstar and m == sstar:
            out.append(f"v_pk_add_f32 {pr(Dr)}, {pr(t)}, {sr(sOne,2)}")
            ncur = zz
            if m == 7: out.append(f"v_mov_b64 {pr(Nr)}, {pr(zz)}")
            continue
        last_old = sstar and m == sstar - 1
        out.append(pkfma(U, ncur, t, ncur))
        out.append(pkfma(SNr if last_old else Nr, zz, Dr, U))
        out.append(pkfma(SDr if last_old else Dr, Dr, t, Dr))
        ncur = Nr
    if CFG.get("exp_nopk"): out = ["s_nop 0" for o in out]
    if sstar == 8:
        out.append(f"v_mov_b64 {pr(Nr)}, 0")
        out.append(f"v_mov_b64 {pr(Dr)}, {sr(sOne,2)}")
    return out

def weave(base, ins):
    out = []
    d = {}
    for p, l in ins: d.setdefault(min(p, len(base)), []).extend(l)
    for i in range(len(base) + 1):
        out += d.get(i, [])
        if i < len(base): out.append(base[i])
    return out

EXLO = f"s_mov_b64 exec, {sr(sLo,2)}"; EXHI = f"s_mov_b64 exec, {sr(sHi,2)}"; EXALL = "s_mov_b64 exec, -1"

def read_idx(): return [f"ds_read_b128 {vr(IDX,4)}, v{aIdx}"]
def read_aux(): return [EXLO, f"ds_read_u16 v{vAux}, v{aX}", EXALL]
def calc_voff():
    return [f"v_mad_u32_u16 v{IDX+u}, v{IDX+u}, s{sK128}, v{chO if u & 1 else chE}" for u in range(4)] + [f"v_add_u32 v{aIdx}, 128, v{aIdx}"]
def read_A():
    return [f"ds_read_b128 {vr(A0+4*s,4)}, v{aA+s}" for s in range(4)]
def read_A5():
    return [EXLO, f"ds_read_b128 {vr(A5,4)}, v{vAux}", EXHI, f"ds_read2_b64 {vr(A5,4)}, v{aX} offset0:0 offset1:0", EXALL]
def dma(cfg):
    L = []
    for u in range(4):
        L.append(f"s_add_u32 m0, s{sStg}, {u*1024}" if u else f"s_mov_b32 m0, s{sStg}")
        L.append("s_nop 0")
        if cfg.get("nodma") == 1: L.append("s_nop 0")
        elif cfg.get("nodma") == 2: L.append(f"buffer_load_dwordx4 v{chE}, {sr(SRD_X,4)}, 0 offen lds")
        else: L.append(f"buffer_load_dwordx4 v{IDX+u}, {sr(SRD_X,4)}, 0 offen lds {cfg.get('xld','')}")
    return L
def q_addr_read(nxt):
    return [f"s_add_u32 s{sT0}, s{sR}, {nxt+1}", f"s_and_b32 s{sT0}, s{sT0}, -2", f"s_lshl_b32 s{sT0}, s{sT0}, 4",
            f"s_add_u32 s{sT1}, s{sR}, {nxt}", f"s_or_b32 s{sT1}, s{sT1}, 1", f"s_lshl_b32 s{sT1}, s{sT1}, 4",
            f"v_add_u32 v{tq}, s{sT0}, v{cSn}", f"v_add_u32 v{tq+1}, s{sT1}, v{cSn}",
            f"ds_read_b32 v{tq}, v{tq}", f"ds_read_b32 v{tq+1}, v{tq+1}"]
def fl_addr_read():
    return [f"s_lshl_b32 s{sT2}, s{sR}, 4", f"v_add_u32 v{FA}, s{sT2}, v{cFl}", f"ds_read_b64 {pr(FA)}, v{FA}"]
def q_addr_calc():
    return [EXLO, f"v_add_u32 v{aQe}, v{tq}, v{cQ}", f"v_add_u32 v{aQo}, v{tq+1}, v{cQ}", EXALL]
def q_read(b):
    return [f"ds_read_b64_tr_b16 {pr(B5+4*b)}, v{aQe} offset:{64*b}", f"ds_read_b64_tr_b16 {pr(B5+4*b+2)}, v{aQo} offset:{64*b}"]

def tile(A, cfg, sstar):
    for l in phaseA(ZA, ZB, 1): A(l)
    ins = [(2, read_idx()), (4, read_aux())]
    if sstar: ins += [(6, q_addr_read(1)), (10, fl_addr_read())]
    for l in weave(chain(ZA, 0, sstar), ins): A(l)
    for l in phaseA(ZB, ZA, 2): A(l)
    ins = [(1, ["s_waitcnt lgkmcnt(0)"] + calc_voff())]
    if sstar: ins += [(2, q_addr_calc()), (4, q_read(0)), (7, q_read(1)), (10, q_read(2))]
    for l in weave(chain(ZB, 1, sstar), ins): A(l)
    for l in phaseA(ZA, ZB, 3): A(l)
    ra = read_A()
    ins = [(0, ["s_waitcnt vmcnt(0)", ra[0], ra[1]]), (1, [ra[2]]), (2, [ra[3]]), (3, read_A5())]
    if sstar: ins += [(5, q_read(3))]
    ins += [(8, [f"v_add_u32 v{aX}, v{incX}, v{aX}"])]
    d = dma(cfg)
    ins += [(19, ["s_waitcnt lgkmcnt(0)"] + d[0:3]), (20, d[3:6]), (21, d[6:9]), (22, d[9:12])]
    for l in weave(chain(ZA, 2, sstar), ins): A(l)
    for l in phaseA(ZB, ZA, 0): A(l)
    for l in chain(ZB, 3, sstar): A(l)

F0 = T0
R0 = T0 + 8
def flush_calc(A, src):
    for b in range(4):
        A(f"v_rcp_f32 v{R0+2*b}, v{src+4*b+2}\nv_rcp_f32 v{R0+2*b+1}, v{src+4*b+3}")
    for b in range(4):
        A(f"v_max3_f32 v{dmax}, v{dmax}, v{src+4*b+2}, v{src+4*b+3}")
    for b in range(4):
        A(f"v_pk_mul_f32 {pr(F0+2*b)}, {pr(src+4*b)}, {pr(R0+2*b)}")
def flush_rows(A):
    for b in range(4):
        A(f"v_pk_fma_f32 {pr(chk)}, {pr(F0+2*b)}, 0, {pr(chk)} op_sel_hi:[1,0,1]")
    for p in range(2):
        A(f"v_cvt_pk_bf16_f32 v{R0+2*p}, v{F0+p}, v{F0+2+p}\nv_cvt_pk_bf16_f32 v{R0+2*p+1}, v{F0+4+p}, v{F0+6+p}")
        A(f"v_add_u32 v{FA+p}, v{FA+p}, v{cS}")
        A(f"ds_write_b64 v{FA+p}, {pr(R0+2*p)}")

def gen_p2(cfg):
    A = Asm()
    CFG.update(cfg)
    ST = 90
    stampn = [0]
    def stp(both=False):
        if cfg.get("stamps") and both and cfg.get("cyc"):
            A(f"s_memrealtime s[90:91]\ns_waitcnt lgkmcnt(0)\nv_writelane_b32 v72, s90, {40+stampn[0]}\nv_writelane_b32 v73, s91, {40+stampn[0]}")
        if cfg.get("stamps"):
            A(f"{'s_memtime' if cfg.get('cyc') else 's_memrealtime'} s[90:91]\ns_waitcnt lgkmcnt(0)\nv_writelane_b32 v72, s90, {stampn[0]}\nv_writelane_b32 v73, s91, {stampn[0]}")
            stampn[0] += 1
    A("s_cmp_ge_u32 s2, 256\ns_cbranch_scc1 M_END")
    A("s_load_dwordx2 s[4:5], s[0:1], 0\ns_load_dwordx2 s[6:7], s[0:1], 64\ns_load_dwordx2 s[8:9], s[0:1], 80")
    if cfg.get("xcdmap", 1):
        A("s_and_b32 s10, s2, 7\ns_lshr_b32 s2, s2, 3\ns_lshl_b32 s10, s10, 5\ns_add_u32 s2, s2, s10")
    A(f"v_and_b32 v{vLane}, 63, v0\nv_lshrrev_b32 v2, 6, v0")
    A(f"v_lshrrev_b32 v3, 4, v{vLane}")
    A(f"v_readfirstlane_b32 s{sW}, v2")
    A("v_lshlrev_b32 v3, 13, v3")
    A(f"s_mul_i32 s{sN0}, s2, {NPB}")
    A(f"s_lshl_b32 s{sT0}, s{sW}, 15\ns_lshl_b32 s{sT1}, s2, 2\ns_add_u32 s{sT0}, s{sT0}, s{sT1}\ns_add_u32 s{sT1}, s{sT0}, 4096")
    if cfg.get("stamps"): A("v_mov_b32 v72, 0\nv_mov_b32 v73, 0")
    stp()
    A("s_waitcnt lgkmcnt(0)")
    srd(A, SRD_OFFS, 8, 65537 * 4, WS_OFFS)
    ENT = 8
    for p in range(8):
        A(f"buffer_load_dword v{ENT+p}, v3, {sr(SRD_OFFS,4)}, s{sT0 if p < 4 else sT1} offen offset:{(p&3)*1024}")
    if cfg.get("fine"): stp()
    srd(A, SRD_X, 4, N * 128); srd(A, SRD_PREP, 8, 52224, WS_PREP)
    srd(A, SRD_KEYS, 8, E * 4, WS_KEYS); srd(A, SRD_EREC, 8, E * 8, WS_EREC); srd(A, SRD_OUT, 6, N * 128)
    XB, WB, QC = 96, 112, 144
    A(f"v_and_b32 v4, 31, v{vLane}\nv_lshrrev_b32 v5, 5, v{vLane}")
    A("v_lshlrev_b32 v6, 4, v5")
    A("v_lshl_add_u32 v7, v4, 7, v6")
    A(f"v_lshlrev_b32 v64, 4, v{vLane}\nv_lshlrev_b32 v65, 2, v{vLane}")
    A(f"s_lshr_b32 s{sT2}, s{sW}, 1\ns_lshl_b32 s{sT2}, s{sT2}, 5\ns_add_u32 s{sT3}, s{sT2}, s{sN0}\ns_lshl_b32 s{sT3}, s{sT3}, 7")
    for s in range(4):
        A(f"buffer_load_dwordx4 {vr(XB+4*s,4)}, v7, {sr(SRD_X,4)}, s{sT3} offen offset:{32*s}")
    if cfg.get("fine"): stp()
    A(f"s_and_b32 s{sT4}, s{sW}, 1\ns_lshl_b32 s{sT0}, s{sT4}, 13\ns_add_u32 s{sT0}, s{sT0}, {PR_WB}\ns_add_u32 s{sT1}, s{sT0}, 4096")
    for i in range(2):
        for s in range(4):
            A(f"buffer_load_dwordx4 {vr(WB+16*i+4*s,4)}, v64, {sr(SRD_PREP,4)}, s{sT0+i} offen offset:{1024*s}")
    if cfg.get("fine"): stp()
    A(f"s_lshl_b32 s{sT0}, s{sT4}, 8\ns_add_u32 s{sT0}, s{sT0}, {PR_B1}")
    for i in range(2):
        for q in range(4):
            A(f"buffer_load_dwordx4 {vr(QC+16*i+4*q,4)}, v6, {sr(SRD_PREP,4)}, s{sT0} offen offset:{128*i+32*q}")
    A(f"s_lshl_b32 s{sT0}, s{sW}, 11\ns_add_u32 m0, s{sT0}, {STG}\ns_nop 0")
    A(f"buffer_load_dwordx4 v64, {sr(SRD_PREP,4)}, s{sT0} offen lds\nbuffer_load_dwordx4 v64, {sr(SRD_PREP,4)}, s{sT0} offen offset:1024 lds")
    A(f"s_mul_i32 s{sT0}, s{sW}, {RS}\ns_add_u32 m0, s{sT0}, {QQ+100*RS}\ns_lshl_b32 s{sT0}, s{sW}, 8\ns_add_u32 s{sT0}, s{sT0}, {PR_WC}")
    A(f"buffer_load_dword v65, {sr(SRD_PREP,4)}, s{sT0} offen lds")
    if cfg.get("fine"): stp()
    A("v_lshlrev_b32 v66, 2, v0\nv_lshlrev_b32 v67, 4, v0")
    A("v_subrev_u32 v68, 4, v0\nv_lshrrev_b32 v69, 3, v68\nv_and_b32 v70, 3, v0")
    A("v_cmp_eq_u32 vcc, v69, v70\nv_and_b32 v68, 4, v68\nv_lshlrev_b32 v68, 2, v68")
    A("v_mov_b32 v69, 0x3f80\nv_lshlrev_b32 v69, v68, v69\nv_cndmask_b32 v69, 0, v69, vcc")
    A("ds_write_b32 v66, v69")
    A("v_cmp_gt_u32 vcc, 25, v0\nv_mov_b32 v80, 0\nv_mov_b32 v81, 0\nv_cndmask_b32 v69, 0, 8, vcc")
    A("v_cmp_gt_u32 vcc, 128, v0\ns_and_saveexec_b64 s[36:37], vcc\nds_write_b32 v66, v69 offset:2048\ns_mov_b64 exec, -1")
    A("v_mov_b32 v82, 0\nv_mov_b32 v83, 0\nv_mov_b32 v84, 0xffff\nv_mov_b32 v85, 0xffff\nv_mov_b32 v86, 0xffff\nv_mov_b32 v87, 0xffff")
    for i in range(2): A(f"ds_write_b128 v67, v[84:87] offset:{KEY+8192*i}")
    for i in range(4): A(f"ds_write_b128 v67, v[80:83] offset:{EE+8192*i}")
    A(f"v_and_b32 v88, 15, v{vLane}\nv_lshlrev_b32 v89, 3, v88\nv_lshlrev_b32 v88, 25, v88")
    A("v_add_u32 v90, 0x1000000, v88\nv_add_u32 v91, 0x2000000, v88")
    if cfg.get("fine"): stp()
    A("s_waitcnt lgkmcnt(0)\ns_barrier")
    stp()
    KEYR, ER, KO = 16, 32, 64
    A("s_waitcnt vmcnt(23)")
    stp()
    ldm = cfg.get("p2_recld", "")
    for p in range(8):
        A(f"v_mad_u32_u24 v{KO+p}, v{ENT+p}, 4, v89")
        A(f"v_cmpx_le_u32 {sr(MASK+4*p,2)}, v90, v{ENT+p}")
        A(f"buffer_load_dwordx2 {vr(KEYR+2*p,2)}, v{KO+p}, {sr(SRD_KEYS,4)}, 0 offen {ldm}")
        A(EXALL)
    for p in range(8):
        A(f"v_lshlrev_b32 v{KO+p}, 1, v{KO+p}")
        A(f"v_cmp_le_u32 {sr(MASK+4*p+2,2)}, v91, v{ENT+p}")
        A(f"s_mov_b64 exec, {sr(MASK+4*p,2)}")
        A(f"buffer_load_dwordx4 {vr(ER+4*p,4)}, v{KO+p}, {sr(SRD_EREC,4)}, 0 offen {ldm}")
        A(EXALL)
    if cfg.get("fine"): stp()
    A(f"v_max3_u32 v92, v{ENT}, v{ENT+1}, v{ENT+2}\nv_max3_u32 v92, v92, v{ENT+3}, v{ENT+4}\nv_max3_u32 v92, v92, v{ENT+5}, v{ENT+6}\nv_max_u32 v92, v92, v{ENT+7}")
    A(f"v_mov_b32 v93, {FBF}\nv_mov_b32 v94, 1")
    A(f"v_cmpx_le_u32 vcc, {hex(33<<24)}, v92\nds_write_b32 v93, v94\n{EXALL}")
    A("s_waitcnt vmcnt(16)\ns_nop 0")
    for i in range(2):
        for s in range(4):
            A(mfma(QC + 16 * i, WB + 16 * i + 4 * s, XB + 4 * s, QC + 16 * i))
    A(f"v_add_u32 v92, s{sT2}, v4\nv_mul_u32_u24 v93, {RS}, v92\nv_lshl_add_u32 v93, v5, 3, v93")
    A(f"s_lshl_b32 s{sT0}, s{sT4}, 7\ns_add_u32 s{sT0}, s{sT0}, {QQ}\nv_add_u32 v93, s{sT0}, v93")
    A(f"s_mov_b32 s{sT1}, {NEG_L2E}")
    A(f"v_cmp_gt_u32 vcc, 100, v92")
    A.nop(8)
    for i in range(2):
        if i == 1: A.nop(2)
        for q in range(4):
            r = QC + 16 * i + 4 * q
            for k in range(4): A(f"v_mul_f32 v{r+k}, s{sT1}, v{r+k}")
            A(f"v_cvt_pk_bf16_f32 v{r}, v{r}, v{r+1}\nv_cvt_pk_bf16_f32 v{r+1}, v{r+2}, v{r+3}")
    A("s_mov_b64 exec, vcc")
    for i in range(2):
        for q in range(4):
            A(f"ds_write_b64 v93, {pr(QC+16*i+4*q)} offset:{64*i+16*q}")
    A(EXALL)
    if cfg.get("fine"): stp()
    CA, RK = 96, 112
    A(f"s_lshl_b32 s{sT0}, s{sN0}, 2\ns_sub_u32 s{sT0}, {CNT}, s{sT0}\nv_mov_b32 v94, 16")
    for p in range(8):
        A(f"s_waitcnt vmcnt({15-p})")
        if p == 0: stp()
        for h in range(2):
            A(f"s_mov_b64 exec, {sr(MASK+4*p+2*h,2)}")
            A(f"v_mad_u32_u16 v{CA+2*p+h}, v{KEYR+2*p+h}, 4, s{sT0} op_sel:[1,0,0,0]")
            A(f"ds_add_rtn_u32 v{RK+2*p+h}, v{CA+2*p+h}, v94")
    A(EXALL)
    if cfg.get("fine"): stp()
    A("s_waitcnt lgkmcnt(0)\ns_barrier")
    stp()
    A(f"s_cmp_lg_u32 s{sW}, 0\ns_cbranch_scc1 M_NOSCHED")
    a, b = 128, 129
    A(f"v_lshlrev_b32 v65, 2, v{vLane}")
    A(f"ds_read2st64_b32 v[128:129], v65 offset0:{CNT//256} offset1:{CNT//256+1}")
    A(f"s_mov_b32 s{sT0}, -1\ns_mov_b32 s{sT1}, 15\nv_mov_b32 v130, 1")
    A(f"v_mul_u32_u24 v140, {RS}, v{vLane}\nv_add_u32 v141, {64*RS}, v140")
    A("s_waitcnt lgkmcnt(0)")
    for i in range(2):
        A(f"v_lshrrev_b32 v{128+i}, 4, v{128+i}\nv_min_u32 v{132+i}, 63, v{128+i}\nv_sub_u32 v{132+i}, 63, v{132+i}\nv_lshlrev_b32 v{132+i}, 2, v{132+i}")
    A(f"ds_add_rtn_u32 v134, v132, v130 offset:{HIST}")
    A(f"s_mov_b64 exec, {sr(sT0,2)}\nds_add_rtn_u32 v135, v133, v130 offset:{HIST}\n{EXALL}")
    A(f"ds_read_b32 v136, v65 offset:{HIST}")
    A("s_waitcnt lgkmcnt(0)\nv_mov_b32 v137, v136")
    wave_scan(A, 137)
    A("v_sub_u32 v137, v137, v136")
    A("ds_bpermute_b32 v138, v132, v137\nds_bpermute_b32 v139, v133, v137")
    A("s_waitcnt lgkmcnt(0)")
    for i in range(2):
        A(f"v_add_u32 v{138+i}, v{138+i}, v{134+i}")
        A(f"v_and_b32 v{142+i}, -4, v{138+i}\nv_lshlrev_b32 v{144+i}, 2, v{138+i}")
    A(f"ds_max_u32 v142, v128 offset:{LRUN}\nds_write_b32 v144, v140 offset:{SNODE}")
    A(f"s_mov_b64 exec, {sr(sT0,2)}\nds_max_u32 v143, v129 offset:{LRUN}\nds_write_b32 v145, v141 offset:{SNODE}\n{EXALL}")
    A(f"ds_read_b32 v136, v65 offset:{LRUN}")
    for i in range(2):
        A(f"v_and_b32 v{146+i}, 7, v{138+i}\nv_lshlrev_b32 v{146+i}, 20, v{146+i}\nv_add_u32 v{146+i}, 0x100000, v{146+i}")
        A(f"v_and_b32 v{144+i}, 12, v{144+i}\nv_or_b32 v{146+i}, v{146+i}, v{144+i}")
    A("s_waitcnt lgkmcnt(0)\nv_mov_b32 v137, v136\nv_mov_b32 v148, v136")
    wave_scan(A, 137, other=[(148, "v_max_u32")])
    A("v_sub_u32 v137, v137, v136")
    A("ds_bpermute_b32 v138, v142, v137\nds_bpermute_b32 v139, v143, v137")
    A(f"v_cmp_gt_u32 vcc, 26, v{vLane}\nv_mov_b32 v149, 0x7fffffff\nv_mov_b32 v150, {LMAXA}\nv_cndmask_b32 v137, v149, v137, vcc")
    A(f"ds_write_b32 v65, v137 offset:{START}")
    A(f"s_mov_b32 s{sT2}, 0\ns_brev_b32 s{sT3}, 1\ns_mov_b64 exec, {sr(sT2,2)}\nds_write_b32 v150, v148\n{EXALL}")
    A("s_waitcnt lgkmcnt(2)")
    for i in range(2):
        A(f"v_lshl_add_u32 v{146+i}, v{138+i}, 4, v{146+i}")
    A(f"ds_write2st64_b32 v65, v146, v147 offset0:{INFO//256} offset1:{INFO//256+1}")
    A.label("M_NOSCHED")
    A(f"v_lshlrev_b32 v64, 4, v{vLane}\nv_add_u32 v64, {STG}, v64")
    A(f"s_cmp_lg_u32 s{sW}, 0\ns_cbranch_scc1 M_WFIRST")
    A("s_waitcnt lgkmcnt(0)\ns_barrier")
    for i in range(16): A(f"ds_read_b128 {vr(W0+4*i,4)}, v64 offset:{1024*i}")
    A("s_branch M_WDONE")
    A.label("M_WFIRST")
    for i in range(16): A(f"ds_read_b128 {vr(W0+4*i,4)}, v64 offset:{1024*i}")
    A("s_waitcnt lgkmcnt(0)\ns_barrier")
    A.label("M_WDONE")
    stp()
    IN = 128
    A(f"v_lshlrev_b32 v65, 2, v{vLane}\nv_mov_b32 v66, {FBF}")
    A(f"ds_read_b32 v70, v65 offset:{START}\nds_read_b64 v[68:69], v66")
    for k in range(16):
        A(f"s_mov_b64 exec, {sr(MASK+2*k,2)}\nds_read_b32 v{IN+k}, v{CA+k} offset:{INFO-CNT}")
    A(EXALL)
    A("s_waitcnt lgkmcnt(15)")
    A(f"v_readlane_b32 s{sT0}, v70, 25\nv_readfirstlane_b32 s{sT1}, v68\nv_readfirstlane_b32 s{sT2}, v69")
    A(f"s_mov_b32 s{sT5}, 0xffff")
    A(f"s_add_u32 s{sT0}, s{sT0}, 7\ns_lshr_b32 s{sT0}, s{sT0}, 3")
    A(f"s_cmp_gt_u32 s{sT0}, {CAPT}\ns_cbranch_scc1 M_FALLBACK")
    A(f"s_cmp_lg_u32 s{sT1}, 0\ns_cbranch_scc1 M_FALLBACK")
    A("s_waitcnt vmcnt(0) lgkmcnt(0)")
    if cfg.get("fine"): stp()
    for k in range(16):
        p, h = k >> 1, k & 1
        A(f"s_mov_b64 exec, {sr(MASK+2*k,2)}")
        A(f"v_mad_u32_u16 v{RK+k}, v{IN+k}, 1, v{RK+k}")
        A(f"v_bfi_b32 v{KEYR+k}, s{sT5}, v{KEYR+k}, v{IN+k}")
        A(f"ds_write_b32 v{RK+k}, v{KEYR+k} offset:{KEY}")
        A(f"v_lshlrev_b32 v{CA+k}, 1, v{RK+k}")
        A(f"ds_write_b64 v{CA+k}, {pr(ER+4*p+2*h)} offset:{EE}")
    A(EXALL)
    if cfg.get("fine"): stp()
    A(f"s_lshr_b32 s{sT1}, s{sT0}, 3\ns_and_b32 s{sT3}, s{sT0}, 7")
    A(f"s_add_u32 s{sT2}, s{sT2}, 7\ns_lshr_b32 s{sT2}, s{sT2}, 3")
    A(f"s_cmp_lt_u32 s{sT1}, s{sT2}\ns_cselect_b32 s{sT3}, 0, s{sT3}\ns_max_u32 s{sT1}, s{sT1}, s{sT2}")
    A(f"s_mul_i32 s{sG0}, s{sW}, s{sT1}\ns_min_u32 s{sT4}, s{sW}, s{sT3}\ns_add_u32 s{sG0}, s{sG0}, s{sT4}")
    A(f"s_add_u32 s{sG1}, s{sG0}, s{sT1}\ns_cmp_lt_u32 s{sW}, s{sT3}\ns_addc_u32 s{sG1}, s{sG1}, 0\ns_min_u32 s{sG1}, s{sG1}, s{sT0}")
    A(f"s_min_u32 s{sG0}, s{sG0}, s{sT0}")
    A(f"v_mov_b32 v{vStart}, v70")
    loop_consts(A)
    A(f"s_lshl_b32 s{sT0}, s{sG0}, 7\nv_add_u32 v{aIdx}, s{sT0}, v{aIdx}\nv_mad_u32_u24 v{aX}, v{incX}, s{sG0}, v{aX}")
    A(f"s_lshl_b32 s{sG0}, s{sG0}, 3\ns_lshl_b32 s{sG1}, s{sG1}, 3")
    A(f"v_cmp_ge_u32 vcc, s{sG0}, v{vStart}")
    A(f"v_mov_b32 v{dmax}, 0\nv_mov_b64 {pr(chk)}, 0")
    A(f"s_bcnt1_i32_b64 s{sT0}, vcc\ns_sub_u32 s{sR}, s{sT0}, 1")
    A(f"v_readlane_b32 s{sBnd}, v{vStart}, s{sT0}\nv_readlane_b32 s{sT1}, v{vStart}, s{sR}")
    for b_ in range(4):
        A(f"v_mov_b64 {pr(ND+4*b_)}, 0\nv_mov_b64 {pr(ND+4*b_+2)}, {sr(sOne,2)}")
    A(f"s_cmp_eq_u32 s{sT1}, s{sG0}\ns_cselect_b32 s{sHead}, 1, 0")
    for l in q_addr_read(0): A(l)
    A("s_waitcnt lgkmcnt(0)\ns_barrier")
    stp()
    A(f"s_cmp_ge_u32 s{sG0}, s{sG1}\ns_cbranch_scc1 M_LOOPDONE")
    for l in read_idx() + read_aux() + q_addr_calc(): A(l)
    A("s_waitcnt lgkmcnt(0)")
    for l in calc_voff() + dma(cfg) + read_idx(): A(l)
    for b_ in range(4):
        for l in q_read(b_): A(l)
    for l in read_A5(): A(l)
    A(f"v_add_u32 v{aX}, v{incX}, v{aX}")
    A("s_waitcnt vmcnt(0)")
    for l in read_A(): A(l)
    A("s_waitcnt lgkmcnt(4)")
    for l in calc_voff(): A(l)
    A("s_waitcnt lgkmcnt(0)")
    for l in dma(cfg): A(l)
    for l in block_mfmas(ZA, 0): A(l)
    A.nop(10)
    stp(True)
    A(".p2align 6") if cfg.get("align", 1) else None
    A.label("M_LOOP")
    A(f"s_sub_u32 s{sS}, s{sBnd}, s{sG0}\ns_cmp_le_u32 s{sS}, 8\ns_cbranch_scc1 M_DISP")
    tile(A, cfg, 0)
    A.label("M_NEXT")
    A(f"s_add_u32 s{sG0}, s{sG0}, 8\ns_cmp_lt_u32 s{sG0}, s{sG1}\ns_cbranch_scc1 M_LOOP")
    A("s_branch M_LOOPEXIT")
    A.label("M_DISP")
    A(f"s_cmp_gt_u32 s{sS}, 4\ns_cbranch_scc1 M_DISP58")
    A(f"s_cmp_eq_u32 s{sS}, 1\ns_cbranch_scc1 M_V1\ns_cmp_eq_u32 s{sS}, 2\ns_cbranch_scc1 M_V2\ns_cmp_eq_u32 s{sS}, 3\ns_cbranch_scc1 M_V3\ns_branch M_V4")
    A.label("M_DISP58")
    A(f"s_cmp_eq_u32 s{sS}, 5\ns_cbranch_scc1 M_V5\ns_cmp_eq_u32 s{sS}, 6\ns_cbranch_scc1 M_V6\ns_cmp_eq_u32 s{sS}, 7\ns_cbranch_scc1 M_V7\ns_branch M_V8")
    for v in range(1, 9):
        A(".p2align 6") if cfg.get("align", 1) else None
        A.label(f"M_V{v}")
        tile(A, cfg, v)
        A("s_branch M_FLUSH")
    A.label("M_FLUSH")
    flush_calc(A, SND)
    A(f"s_add_u32 s{sR}, s{sR}, 1\ns_add_u32 s{sT0}, s{sR}, 1")
    A(f"v_readlane_b32 s{sBnd}, v{vStart}, s{sT0}")
    A(f"s_cmp_eq_u32 s{sHead}, 0\ns_cbranch_scc1 M_FLUSHT")
    flush_rows(A)
    A("s_branch M_NEXT")
    A.label("M_FLUSHT")
    A(f"ds_write_b128 v{aT}, {vr(F0,4)}\nds_write_b128 v{aT}, {vr(F0+4,4)} offset:16")
    A(f"s_lshl_b32 s{sT0}, s{sW}, 2\nv_mov_b32 v{vtmp}, s{sT0}\nv_mov_b32 v{vtmp+1}, 1\ns_mov_b32 s{sHead}, 1")
    A(f"ds_write_b32 v{vtmp}, v{vtmp+1} offset:{TFLG}")
    A("s_waitcnt lgkmcnt(0)")
    A("s_branch M_NEXT")
    A.label("M_LOOPEXIT")
    stp()
    A(f"s_cmp_ge_u32 s{sR}, 25\ns_cbranch_scc1 M_LOOPDONE")
    A(f"v_readlane_b32 s{sT1}, v{vStart}, s{sR}")
    for l in fl_addr_read(): A(l)
    A(f"s_cmp_ge_u32 s{sT1}, s{sG1}\ns_cbranch_scc1 M_LOOPDONE")
    flush_calc(A, ND)
    A(f"s_lshl_b32 s{sT0}, s{sW}, 2\nv_mov_b32 v{vtmp}, s{sT0}")
    A.label("M_TWAIT")
    A(f"ds_read_b32 v{vtmp+1}, v{vtmp} offset:{TFLG+4}")
    A(f"ds_read_b128 {vr(R0,4)}, v{aT} offset:2048\nds_read_b128 {vr(R0+4,4)}, v{aT} offset:2064")
    A("s_waitcnt lgkmcnt(0)")
    A(f"v_readfirstlane_b32 s{sT0}, v{vtmp+1}\ns_cmp_eq_u32 s{sT0}, 0\ns_cbranch_scc1 M_TWAIT")
    for b_ in range(4): A(f"v_pk_add_f32 {pr(F0+2*b_)}, {pr(F0+2*b_)}, {pr(R0+2*b_)}")
    flush_rows(A)
    A.label("M_LOOPDONE")
    A(f"v_add_f32 v{chk}, v{chk}, v{chk+1}\nv_add_f32 v{chk}, v{chk}, v{dmax}\nv_mov_b32 v{vtmp}, {FBF}\nv_mov_b32 v{vtmp+1}, 1")
    A(f"v_cmpx_nle_f32 vcc, v{chk}, v{vtmp+2}") if False else None
    A(f"s_mov_b32 s{sT0}, 0x7b800000")
    A(f"v_cmpx_ngt_f32 vcc, s{sT0}, v{chk}\nds_write_b32 v{vtmp}, v{vtmp+1}\n{EXALL}")
    A("s_waitcnt vmcnt(0)")
    epi_loads(A)
    A("s_waitcnt lgkmcnt(0)\ns_barrier")
    stp(True)
    A(f"ds_read_b32 v{vtmp+1}, v{vtmp}")
    epi_reads(A)
    A("s_waitcnt lgkmcnt(9)")
    if not cfg.get("nofb"): A(f"v_readfirstlane_b32 s{sT0}, v{vtmp+1}\ns_cmp_lg_u32 s{sT0}, 0\ns_cbranch_scc1 M_FALLBACK2")
    A.label("M_EPI")
    epi_compute(A, cfg)
    if cfg.get("stamps"):
        stp()
        A("s_waitcnt vmcnt(0)")
        stp()
        srd(A, 92, 8, 0x100000, WS_STAMP2)
        A(f"s_lshl_b32 s96, s2, 3\ns_add_u32 s96, s96, s{sW}\ns_mul_i32 s96, s96, {64*8}")
        A(f"v_lshlrev_b32 v70, 3, v{vLane}")
        A("buffer_store_dwordx2 v[72:73], v70, s[92:95], s96 offen")
        print("P2 stamps:", stampn[0])
    A("s_endpgm")
    fallback(A, cfg)
    A.label("M_END")
    A("s_endpgm")
    return A

def loop_consts(A):
    t = 144
    L = vLane
    A(f"s_mov_b32 s{sLo}, -1\ns_mov_b32 s{sLo+1}, 0\ns_mov_b32 s{sHi}, 0\ns_mov_b32 s{sHi+1}, -1\ns_mov_b32 s{sOne}, 1.0\ns_mov_b32 s{sOne+1}, 1.0\ns_movk_i32 s{sK128}, 128")
    A(f"s_lshl_b32 s{sStg}, s{sW}, 12\ns_add_u32 s{sStg}, s{sStg}, {STG}")
    A(f"v_bfe_u32 v{t}, v{L}, 3, 2\nv_bfe_u32 v{t+1}, v{L}, 1, 1\nv_lshl_or_b32 v{t+1}, v{t}, 1, v{t+1}")
    A(f"v_bfe_u32 v{t+2}, v{L}, 2, 1\nv_and_b32 v{t+3}, 1, v{L}\nv_lshl_or_b32 v{t+2}, v{t+2}, 1, v{t+3}")
    A(f"v_lshl_or_b32 v{t+4}, v{t}, 1, v{t+3}")
    A(f"v_lshrrev_b32 v{t+5}, 5, v{L}")
    A(f"v_lshl_add_u32 v{t+6}, v{t+2}, 3, v{t+1}\nv_lshlrev_b32 v{t+6}, 7, v{t+6}\nv_add_u32 v{t+6}, s{sStg}, v{t+6}")
    for s in range(4):
        A(f"v_or_b32 v{t+7}, {2*s}, v{t+5}\nv_xor_b32 v{t+7}, v{t+7}, v{t+4}\nv_lshl_add_u32 v{aA+s}, v{t+7}, 4, v{t+6}")
    A(f"v_lshl_add_u32 v{t+7}, v{t+1}, 2, v{t+2}\nv_lshlrev_b32 v{t+7}, 2, v{t+7}\nv_lshlrev_b32 v{t+7}, v{t+5}, v{t+7}")
    A(f"v_mov_b32 v{t+8}, {EE-KEY-2}\nv_mad_u32_u24 v{t+7}, v{t+5}, v{t+8}, v{t+7}\nv_add_u32 v{aX}, {KEY+2}, v{t+7}")
    A(f"v_mov_b32 v{incX}, 128\nv_lshlrev_b32 v{incX}, v{t+5}, v{incX}")
    A(f"v_lshrrev_b32 v{t+7}, 3, v{L}\nv_lshlrev_b32 v{aIdx}, 4, v{t+7}\nv_add_u32 v{aIdx}, {KEY}, v{aIdx}")
    A(f"v_and_b32 v{t+7}, 6, v{t+7}\nv_and_b32 v{t+8}, 7, v{L}\nv_xor_b32 v{t+7}, v{t+7}, v{t+8}\nv_lshlrev_b32 v{chE}, 4, v{t+7}\nv_xor_b32 v{chO}, 16, v{chE}")
    A(f"v_bfe_u32 v{t+7}, v{L}, 4, 1\nv_and_b32 v{t+8}, 3, v{L}\nv_lshlrev_b32 v{t+7}, 5, v{t+7}\nv_lshl_add_u32 v{t+7}, v{t+8}, 3, v{t+7}\nv_add_u32 v{cQ}, {QQ}, v{t+7}")
    A(f"v_bfe_u32 v{t+7}, v{L}, 2, 2\nv_mul_u32_u24 v{t+8}, {RS}, v{t+7}\nv_add_u32 v{t+8}, v{t+8}, v{cQ}")
    A(f"v_add_u32 v{aQe}, {100*RS}, v{t+8}\nv_add_u32 v{aQo}, {104*RS}, v{t+8}")
    A(f"v_lshlrev_b32 v{cSn}, 2, v{t+7}\nv_add_u32 v{cSn}, {SNODE}, v{cSn}")
    A(f"v_lshlrev_b32 v{cFl}, 3, v{t+5}\nv_add_u32 v{cFl}, {SNODE}, v{cFl}")
    A(f"v_and_b32 v{t+7}, 31, v{L}\nv_lshlrev_b32 v{cS}, 3, v{t+7}\nv_add_u32 v{cS}, {SS}, v{cS}")
    A(f"s_lshl_b32 s{sT4}, s{sW}, 11\ns_add_u32 s{sT4}, s{sT4}, {TT}\nv_lshlrev_b32 v{aT}, 5, v{L}\nv_add_u32 v{aT}, s{sT4}, v{aT}")

W2R, B2R, SFR, OACC = 76, 108, 124, 156
def epi_loads(A):
    L = vLane
    A(f"v_lshlrev_b32 v40, 4, v{L}\nv_lshrrev_b32 v41, 5, v{L}\nv_lshlrev_b32 v42, 4, v41")
    A(f"s_and_b32 s{sT4}, s{sW}, 1\ns_lshl_b32 s{sT0}, s{sT4}, 13\ns_add_u32 s{sT0}, s{sT0}, {PR_W2}\ns_add_u32 s{sT1}, s{sT0}, 4096")
    for s in range(8):
        A(f"buffer_load_dwordx4 {vr(W2R+4*s,4)}, v40, {sr(SRD_PREP,4)}, s{sT0+(s>>2)} offen offset:{1024*(s&3)}")
    A(f"s_lshl_b32 s{sT0}, s{sT4}, 7\ns_add_u32 s{sT0}, s{sT0}, {PR_B2}")
    for q in range(4):
        A(f"buffer_load_dwordx4 {vr(B2R+4*q,4)}, v42, {sr(SRD_PREP,4)}, s{sT0} offen offset:{32*q}")
    A(f"s_lshr_b32 s{sT2}, s{sW}, 1\ns_lshl_b32 s{sT2}, s{sT2}, 5\nv_and_b32 v43, 31, v{L}\nv_add_u32 v43, s{sT2}, v43")
    A(f"v_min_u32 v44, 99, v43\nv_lshlrev_b32 v45, 2, v44\nv_mul_u32_u24 v44, {RS}, v44\nv_add_u32 v44, v44, v42\nv_add_u32 v44, {SS}, v44")
    A(f"v_lshlrev_b32 v46, 7, v43\nv_lshl_add_u32 v46, v41, 3, v46")
    A(f"s_lshl_b32 s{sT3}, s{sN0}, 7\ns_lshl_b32 s{sT4}, s{sT4}, 6\ns_add_u32 s{sT3}, s{sT3}, s{sT4}")
def epi_reads(A):
    A(f"ds_read_b32 v47, v45 offset:{CNT}")
    for s in range(8): A(f"ds_read_b128 {vr(SFR+4*s,4)}, v44 offset:{32*s}")
def epi_compute(A, cfg):
    A("s_waitcnt vmcnt(0)")
    for s in range(8):
        A(f"s_waitcnt lgkmcnt({7-s})")
        A(mfma(OACC, W2R + 4 * s, SFR + 4 * s, None if s == 0 else OACC))
    A(f"v_lshrrev_b32 v47, 4, v47\nv_cvt_f32_u32 v47, v47\ns_mov_b32 s{sT0}, 0xbf317218")
    for r in range(16): A(f"v_mul_f32 v{B2R+r}, v47, v{B2R+r}")
    A(f"v_cmp_gt_u32 vcc, {NPB}, v43")
    for q in range(4):
        for k in range(4): A(f"v_fmac_f32 v{B2R+4*q+k}, s{sT0}, v{OACC+4*q+k}")
        A(f"v_cvt_pk_bf16_f32 v{B2R+4*q}, v{B2R+4*q}, v{B2R+4*q+1}\nv_cvt_pk_bf16_f32 v{B2R+4*q+1}, v{B2R+4*q+2}, v{B2R+4*q+3}")
    A("s_mov_b64 exec, vcc")
    for q in range(4):
        A(f"buffer_store_dwordx2 {pr(B2R+4*q)}, v46, {sr(SRD_OUT,4)}, s{sT3} offen offset:{16*q}")
    A(EXALL)

def fallback(A, cfg):
    L = vLane
    A.label("M_FALLBACK")
    A.label("M_FALLBACK2")
    A("s_waitcnt vmcnt(0) lgkmcnt(0)\ns_barrier")
    loop_consts(A)
    A("v_lshlrev_b32 v40, 4, v0\nv_mov_b64 v[44:45], 0\nv_mov_b64 v[46:47], 0\nv_lshlrev_b32 v41, 2, v0")
    for i in range(6): A(f"ds_write_b128 v40, v[44:47] offset:{SF+8192*i}")
    A(f"v_cmpx_gt_u32 vcc, 128, v0\nds_write_b128 v40, v[44:47] offset:{SF+8192*6}\nds_write_b32 v41, v44 offset:{CNT}\n{EXALL}")
    for b_ in range(4):
        for l in q_read(b_): A(l)
    A(f"v_and_b32 v40, 31, v{L}\nv_lshrrev_b32 v41, 5, v{L}\nv_lshlrev_b32 v42, 4, v41")
    A(f"v_lshlrev_b32 v43, 1, v40\nv_add_u32 v43, {QQ}, v43\nv_lshlrev_b32 v44, 2, v40\nv_add_u32 v44, {SF}, v44")
    A("s_waitcnt lgkmcnt(0)\ns_barrier")
    sC, sCe, sP, sEnd = sG0, sG1, sR, sBnd
    A(f"s_lshl_b32 s{sC}, s{sW}, 5\ns_add_u32 s{sCe}, s{sC}, 32")
    A.label("F_SEG")
    A(f"s_lshl_b32 s{sT0}, s{sC}, 8\ns_add_u32 s{sT0}, s{sT0}, s2\ns_lshl_b32 s{sT0}, s{sT0}, 2\nv_mov_b32 v46, s{sT0}")
    A(f"buffer_load_dwordx2 v[46:47], v46, {sr(SRD_OFFS,4)}, 0 offen\ns_waitcnt vmcnt(0)")
    A(f"v_readfirstlane_b32 s{sP}, v46\nv_readfirstlane_b32 s{sEnd}, v47")
    A(f"s_and_b32 s{sP}, s{sP}, 0xffffff\ns_and_b32 s{sEnd}, s{sEnd}, 0xffffff")
    A.label("F_PIECE")
    A(f"s_cmp_ge_u32 s{sP}, s{sEnd}\ns_cbranch_scc1 F_SEGEND")
    A(f"v_add_u32 v46, s{sP}, v40\nv_cmp_gt_u32 {sr(MASK,2)}, s{sEnd}, v46\nv_lshlrev_b32 v47, 2, v46\nv_lshlrev_b32 v46, 3, v46")
    A(f"buffer_load_dword v48, v47, {sr(SRD_KEYS,4)}, 0 offen\nbuffer_load_dwordx2 {pr(A5)}, v46, {sr(SRD_EREC,4)}, 0 offen")
    A("s_waitcnt vmcnt(0)")
    A(f"v_and_b32 v49, 0xffff, v48\nv_lshrrev_b32 v48, 16, v48\nv_subrev_u32 v48, s{sN0}, v48\nv_mov_b32 v50, 99\nv_mov_b32 v51, 0xffff")
    A(f"v_cndmask_b32 v48, v50, v48, {sr(MASK,2)}\nv_cndmask_b32 v49, v51, v49, {sr(MASK,2)}")
    A(f"v_lshl_add_u32 v49, v49, 7, v42")
    for s in range(4): A(f"buffer_load_dwordx4 {vr(A0+4*s,4)}, v49, {sr(SRD_X,4)}, 0 offen offset:{32*s}")
    A(f"s_and_b64 {sr(MASK+2,2)}, {sr(MASK,2)}, {sr(sHi,2)}\ns_and_b64 {sr(MASK+4,2)}, {sr(MASK,2)}, {sr(sLo,2)}")
    A(f"v_cndmask_b32 v{A5}, 0, v{A5}, {sr(MASK+2,2)}\nv_cndmask_b32 v{A5+1}, 0, v{A5+1}, {sr(MASK+2,2)}")
    A(f"v_mov_b64 {pr(A5+2)}, {pr(A5)}")
    A(f"v_lshlrev_b32 v50, 2, v48\nv_mov_b32 v51, 16\ns_mov_b64 exec, {sr(MASK+4,2)}\nds_add_u32 v50, v51 offset:{CNT}\n{EXALL}")
    QA, SA = 76, 92
    for r in range(16):
        A(f"ds_bpermute_b32 v{QA+r}, v42, v48 offset:{((r>>2)*8+(r&3))*4}")
    A("s_waitcnt lgkmcnt(0)")
    A(f"s_movk_i32 s{sT0}, {RS}")
    for r in range(16):
        A(f"v_lshl_add_u32 v{SA+r}, v{QA+r}, 9, v44\nv_mad_u32_u24 v{QA+r}, v{QA+r}, s{sT0}, v43")
    A("s_waitcnt vmcnt(0)")
    for b_ in range(4):
        for l in block_mfmas(ZA, b_): A(l)
        for r in range(16): A(f"ds_read_u16 v{T0+r}, v{QA+r} offset:{64*b_}")
        A("s_waitcnt lgkmcnt(0)")
        for r in range(16):
            A(f"v_lshlrev_b32 v{T0+r}, 16, v{T0+r}\nv_add_f32 v{ZB+r}, v{ZA+r}, v{T0+r}\nv_exp_f32 v{T0+r}, v{ZB+r}")
        for r in range(16): A(f"v_add_f32 v{T0+r}, 1.0, v{T0+r}")
        for r in range(16): A(f"v_rcp_f32 v{T0+r}, v{T0+r}")
        for r in range(16): A(f"v_mul_f32 v{ZB+r}, v{ZB+r}, v{T0+r}")
        for r in range(16): A(f"ds_add_f32 v{SA+r}, v{ZB+r} offset:{128*b_}")
        A("s_waitcnt lgkmcnt(0)")
    A(f"s_add_u32 s{sP}, s{sP}, 32\ns_branch F_PIECE")
    A.label("F_SEGEND")
    A(f"s_add_u32 s{sC}, s{sC}, 1\ns_cmp_lt_u32 s{sC}, s{sCe}\ns_cbranch_scc1 F_SEG")
    A("s_waitcnt vmcnt(0) lgkmcnt(0)\ns_barrier")
    for i in range(7):
        A(f"v_lshrrev_b32 v46, 5, v0\nv_add_u32 v46, {16*i}, v46\nv_min_u32 v46, 99, v46")
        A(f"v_lshl_add_u32 v47, v46, 9, v44\nv_mul_u32_u24 v46, {RS}, v46\nv_add_u32 v46, v46, v{cS}")
        A("ds_read2_b32 v[48:49], v47 offset0:0 offset1:32\nds_read2_b32 v[50:51], v47 offset0:64 offset1:96\ns_waitcnt lgkmcnt(0)")
        A("v_cvt_pk_bf16_f32 v48, v48, v49\nv_cvt_pk_bf16_f32 v49, v50, v51\nds_write_b64 v46, v[48:49]\ns_waitcnt lgkmcnt(0)")
    epi_loads(A)
    A("s_waitcnt lgkmcnt(0)\ns_barrier")
    epi_reads(A)
    A("s_branch M_EPI")
```

```python
import sys, json
from asmlib import *
import p1
HEAD = open("standalone__edge_featured_mpnn_mpnn__graph.s.ref").read().split("; Override launch")[0]
def kernel(name, A, vgpr, sgpr, extra=""):
    code = f".globl {name}\n.p2align 8\n.type {name},@function\n{name}:\n" + A.text()
    acc = (vgpr + 3) // 4 * 4
    desc = f""".p2align 6
.amdhsa_kernel {name}
  .amdhsa_next_free_vgpr {vgpr}
  .amdhsa_next_free_sgpr {sgpr}
  .amdhsa_accum_offset {acc}
  .amdhsa_group_segment_fixed_size 0
  .amdhsa_kernarg_size 88
  .amdhsa_user_sgpr_count 2
  .amdhsa_user_sgpr_kernarg_segment_ptr 1
  .amdhsa_system_sgpr_workgroup_id_x 1
{extra}.end_amdhsa_kernel
"""
    return code, desc
def build(cfg, outfile):
    ks = []
    A1 = p1.gen_p1(cfg); lint(A1.lines)
    ks.append(("mpnn_part_kernel", A1, 56, 96, (256, p1.P1_THREADS, p1.P1_LDS)))
    if not cfg.get("p1only"):
        import p2
        A2 = p2.gen_p2(cfg); lint(A2.lines)
        ks.append(("mpnn_main_kernel", A2, 256, 102, (256, 512, p2.LDS_TOTAL)))
    if cfg.get("probe"):
        a, b, mult = cfg["probe"]
        P = Asm()
        P("s_cmp_lg_u32 s2, 0\ns_cbranch_scc1 PB_END")
        P("s_load_dwordx2 s[4:5], s[0:1], 80\ns_memrealtime s[10:11]\ns_waitcnt lgkmcnt(0)")
        P(f"s_add_u32 s6, s4, {a}\ns_addc_u32 s7, s5, 0\ns_load_dwordx2 s[12:13], s[6:7], 0")
        if b >= 0: P(f"s_add_u32 s8, s4, {b}\ns_addc_u32 s9, s5, 0\ns_load_dwordx2 s[14:15], s[8:9], 0")
        else: P("s_mov_b32 s14, s10")
        P(f"s_waitcnt lgkmcnt(0)\ns_sub_u32 s16, s14, s12\ns_min_u32 s16, s16, 20000\ns_mul_i32 s16, s16, {mult}")
        P.label("PB_SPIN")
        P("s_memrealtime s[18:19]\ns_waitcnt lgkmcnt(0)\ns_sub_u32 s18, s18, s10\ns_cmp_lt_u32 s18, s16\ns_cbranch_scc1 PB_SPIN")
        P.label("PB_END")
        P("s_endpgm")
        ks.append(("probe_kernel", P, 8, 32, (1, 64, 0)))
    s = HEAD
    for n, A, v, sg, (g, b, l) in ks:
        s += f"; @launch kernel={n} grid=({g},1,1) block=({b},1,1) lds={l}\n"
    s += '.amdgcn_target "amdgcn-amd-amdhsa--gfx950"\n.text\n'
    descs = ""
    for n, A, v, sg, _ in ks:
        c, d = kernel(n, A, v, sg); s += c; descs += d
    s += '.section .rodata,"a"\n' + descs
    open(outfile, "w").write(s)
if __name__ == "__main__":
    cfg = json.loads(sys.argv[2]) if len(sys.argv) > 2 else {}
    build(cfg, sys.argv[1])
```

```python
from asmlib import *
E = 800000; N = 25000; CH = 3128; CS = 3136; NPB = 98
NEG_L2E = "0xbfb8aa3b"
WS_KEYS = 0; WS_EREC = 0x400000; WS_GRAN = 0xB00000; EFLG_OFF = 0x80000; WS_STAMP = 0xD00000
PAT = 0; TFLG = 160; FBF = 192; LMAXA = 196; KCTR = 200; ECTR = 204; SCTR = 208; SDONE = 212; NONCE = 216
B1F = 256; B2F = 768; CNT = 1024; INFO = 1536; SNODE = 2048; HIST = 2560; LRUN = 2816; START = 3072
KEY = 3328; CAPALL = 128; CAPT = 126
EE = KEY + CAPALL * 128
RS = 272
QQ = EE + CAPALL * 256
TT = QQ + 108 * RS
SS = TT + 16384
STG = SS + 100 * RS
LDS_TOTAL = STG + 32768
assert STG % 256 == 0 and LDS_TOTAL <= 163840 and EE % 256 == 0
P_CNT = KEY; P_BASE = KEY + 1024; P_KEY = TT; P_E = TT + CS * 4
assert P_E + CS * 8 <= STG
W2RAW = EE; WA = STG; WBR = STG + 16384
SF = INFO
assert SF + 99 * 512 <= QQ
W0 = 192; B5 = 176; A0 = 156; A5 = 172; ZA = 124; ZB = 140; T0 = 108; ND = 92; SND = 76; U = 74
vLane = 1; aA = 2; aX = 6; incX = 7; aIdx = 8; chE = 9; chO = 10; vAux = 11; IDX = 12
vStart = 16; dmax = 17; chk = 18; cQ = 20; aQe = 21; aQo = 22; cSn = 23; cFl = 24; cS = 25; FA = 26
tq = 28; aT = 30; vtmp = 32
W2R = 34
vt2 = 66
def Wf(b, s): return W0 + (b * 4 + s) * 4
sW = 3
SRD_X, SRD_OUT, SRD_KEYS, SRD_EREC, SRD_GRAN, SRD_A, SRD_B, SRD_C = 28, 32, 36, 40, 44, 48, 52, 56
MASK = 60
sG0, sG1, sR, sBnd, sHead, sStg, sS, sK128 = 4, 5, 6, 7, 8, 9, 10, 11
sLo, sHi, sOne = 12, 14, 16
sT0, sT1, sT2, sT3, sT4, sT5 = 18, 19, 20, 21, 22, 23
sN0, sB, sNonce, sSpin, sMB, sEdone = 26, 27, 92, 93, 94, 96
sE0, sE1, sE2 = 97, 98, 99
SST = 100

CFG = {}
def pr(r): return f"v[{r}:{r+1}]"
def pkfma(d, a, b, c): return f"v_pk_fma_f32 {pr(d)}, {pr(a)}, {pr(b)}, {pr(c)}"
def mfma(d, a, b, c):
    cs = "0" if c is None else vr(c, 16)
    return f"v_mfma_f32_32x32x16_bf16 {vr(d,16)}, {vr(a,4)}, {vr(b,4)}, {cs}"
def srd(A, d, base, nbytes, off=0):
    if off: A(f"s_add_u32 s{d}, s{base}, {hex(off)}\ns_addc_u32 s{d+1}, s{base+1}, 0")
    else: A(f"s_mov_b32 s{d}, s{base}\ns_mov_b32 s{d+1}, s{base+1}")
    A(f"s_mov_b32 s{d+2}, {hex(nbytes)}\ns_mov_b32 s{d+3}, 0x20000")
def wave_scan(A, regs):
    steps = ["row_shr:1 row_mask:0xf", "row_shr:2 row_mask:0xf", "row_shr:4 row_mask:0xf", "row_shr:8 row_mask:0xf",
             "row_bcast:15 row_mask:0xa", "row_bcast:31 row_mask:0xc"]
    for st in steps:
        A.nop(max(0, 2 - (len(regs) - 1)) if st != steps[0] else 2)
        for r, o in regs: A(f"{o}_dpp v{r}, v{r}, v{r} {st} bank_mask:0xf")

EXLO = f"s_mov_b64 exec, {sr(sLo,2)}"; EXHI = f"s_mov_b64 exec, {sr(sHi,2)}"; EXALL = "s_mov_b64 exec, -1"

def block_mfmas(z, b):
    L = [mfma(z, A0 + 4 * s, Wf(b, s), None if s == 0 else z) for s in range(4)]
    L.append(mfma(z, A5, B5 + 4 * b, z))
    return L

def phaseA(zc, zn, bn):
    ms = block_mfmas(zn, bn)
    x = CFG.get("exp_mfma")
    if x == "none": ms = ["s_nop 0"] * 5
    if x == "only5": ms = ["s_nop 0"] * 4 + [mfma(zn, A5, B5 + 4 * bn, None)]
    if x == "all5": ms = [mfma(zn, A5, B5 + 4 * bn, None)] * 5
    out = []
    for i in range(16):
        if i % 3 == 0 and i // 3 < 5: out.append(ms[i // 3])
        if not CFG.get("exp_noexp"): out.append(f"v_exp_f32 v{T0+i}, v{zc+i}")
    return out

def chain(z, b, sstar):
    Nr, Dr = ND + 4 * b, ND + 4 * b + 2
    SNr, SDr = SND + 4 * b, SND + 4 * b + 2
    out = []
    ncur = Nr
    for m in range(8):
        t = T0 + 2 * m; zz = z + 2 * m
        if sstar and m == sstar:
            out.append(f"v_pk_add_f32 {pr(Dr)}, {pr(t)}, {sr(sOne,2)}")
            ncur = zz
            if m == 7: out.append(f"v_mov_b64 {pr(Nr)}, {pr(zz)}")
            continue
        last_old = sstar and m == sstar - 1
        out.append(pkfma(U, ncur, t, ncur))
        out.append(pkfma(SNr if last_old else Nr, zz, Dr, U))
        out.append(pkfma(SDr if last_old else Dr, Dr, t, Dr))
        ncur = Nr
    if CFG.get("exp_nopk"): out = ["s_nop 0" for o in out]
    if sstar == 8:
        out.append(f"v_mov_b64 {pr(Nr)}, 0")
        out.append(f"v_mov_b64 {pr(Dr)}, {sr(sOne,2)}")
    return out

def weave(base, ins):
    out = []
    d = {}
    for p, l in ins: d.setdefault(min(p, len(base)), []).extend(l)
    for i in range(len(base) + 1):
        out += d.get(i, [])
        if i < len(base): out.append(base[i])
    return out


def read_idx(): return [f"ds_read_b128 {vr(IDX,4)}, v{aIdx}"]
def read_aux(): return [EXLO, f"ds_read_u16 v{vAux}, v{aX}", EXALL]
def calc_voff():
    return [f"v_mad_u32_u16 v{IDX+u}, v{IDX+u}, s{sK128}, v{chO if u & 1 else chE}" for u in range(4)] + [f"v_add_u32 v{aIdx}, 128, v{aIdx}"]
def read_A():
    return [f"ds_read_b128 {vr(A0+4*s,4)}, v{aA+s}" for s in range(4)]
def read_A5():
    return [EXLO, f"ds_read_b128 {vr(A5,4)}, v{vAux}", EXHI, f"ds_read2_b64 {vr(A5,4)}, v{aX} offset0:0 offset1:0", EXALL]
def dma(cfg):
    L = []
    for u in range(4):
        L.append(f"s_add_u32 m0, s{sStg}, {u*1024}" if u else f"s_mov_b32 m0, s{sStg}")
        L.append("s_nop 0")
        if cfg.get("nodma") == 1: L.append("s_nop 0")
        elif cfg.get("nodma") == 2: L.append(f"buffer_load_dwordx4 v{chE}, {sr(SRD_X,4)}, 0 offen lds")
        else: L.append(f"buffer_load_dwordx4 v{IDX+u}, {sr(SRD_X,4)}, 0 offen lds {cfg.get('xld','')}")
    return L
def q_addr_read(nxt):
    return [f"s_add_u32 s{sT0}, s{sR}, {nxt+1}", f"s_and_b32 s{sT0}, s{sT0}, -2", f"s_lshl_b32 s{sT0}, s{sT0}, 4",
            f"s_add_u32 s{sT1}, s{sR}, {nxt}", f"s_or_b32 s{sT1}, s{sT1}, 1", f"s_lshl_b32 s{sT1}, s{sT1}, 4",
            f"v_add_u32 v{tq}, s{sT0}, v{cSn}", f"v_add_u32 v{tq+1}, s{sT1}, v{cSn}",
            f"ds_read_b32 v{tq}, v{tq}", f"ds_read_b32 v{tq+1}, v{tq+1}"]
def fl_addr_read():
    return [f"s_lshl_b32 s{sT2}, s{sR}, 4", f"v_add_u32 v{FA}, s{sT2}, v{cFl}", f"ds_read_b64 {pr(FA)}, v{FA}"]
def q_addr_calc():
    return [EXLO, f"v_add_u32 v{aQe}, v{tq}, v{cQ}", f"v_add_u32 v{aQo}, v{tq+1}, v{cQ}", EXALL]
def q_read(b):
    return [f"ds_read_b64_tr_b16 {pr(B5+4*b)}, v{aQe} offset:{64*b}", f"ds_read_b64_tr_b16 {pr(B5+4*b+2)}, v{aQo} offset:{64*b}"]

def tile(A, cfg, sstar):
    for l in phaseA(ZA, ZB, 1): A(l)
    ins = [(2, read_idx()), (4, read_aux())]
    if sstar: ins += [(6, q_addr_read(1)), (10, fl_addr_read())]
    for l in weave(chain(ZA, 0, sstar), ins): A(l)
    for l in phaseA(ZB, ZA, 2): A(l)
    ins = [(1, ["s_waitcnt lgkmcnt(0)"] + calc_voff())]
    if sstar: ins += [(2, q_addr_calc()), (4, q_read(0)), (7, q_read(1)), (10, q_read(2))]
    for l in weave(chain(ZB, 1, sstar), ins): A(l)
    for l in phaseA(ZA, ZB, 3): A(l)
    ra = read_A()
    ins = [(0, ["s_waitcnt vmcnt(0)", ra[0], ra[1]]), (1, [ra[2]]), (2, [ra[3]]), (3, read_A5())]
    if sstar: ins += [(5, q_read(3))]
    ins += [(8, [f"v_add_u32 v{aX}, v{incX}, v{aX}"])]
    d = dma(cfg)
    ins += [(19, ["s_waitcnt lgkmcnt(0)"] + d[0:3]), (20, d[3:6]), (21, d[6:9]), (22, d[9:12])]
    for l in weave(chain(ZA, 2, sstar), ins): A(l)
    for l in phaseA(ZB, ZA, 0): A(l)
    for l in chain(ZB, 3, sstar): A(l)

F0 = T0
R0 = T0 + 8
def flush_calc(A, src):
    for b in range(4):
        A(f"v_rcp_f32 v{R0+2*b}, v{src+4*b+2}\nv_rcp_f32 v{R0+2*b+1}, v{src+4*b+3}")
    for b in range(4):
        A(f"v_max3_f32 v{dmax}, v{dmax}, v{src+4*b+2}, v{src+4*b+3}")
    for b in range(4):
        A(f"v_pk_mul_f32 {pr(F0+2*b)}, {pr(src+4*b)}, {pr(R0+2*b)}")
def flush_rows(A):
    for b in range(4):
        A(f"v_pk_fma_f32 {pr(chk)}, {pr(F0+2*b)}, 0, {pr(chk)} op_sel_hi:[1,0,1]")
    for p in range(2):
        A(f"v_cvt_pk_bf16_f32 v{R0+2*p}, v{F0+p}, v{F0+2+p}\nv_cvt_pk_bf16_f32 v{R0+2*p+1}, v{F0+4+p}, v{F0+6+p}")
        A(f"v_add_u32 v{FA+p}, v{FA+p}, v{cS}")
        A(f"ds_write_b64 v{FA+p}, {pr(R0+2*p)}")

def loop_consts(A):
    t = 144
    L = vLane
    A(f"s_mov_b32 s{sLo}, -1\ns_mov_b32 s{sLo+1}, 0\ns_mov_b32 s{sHi}, 0\ns_mov_b32 s{sHi+1}, -1\ns_mov_b32 s{sOne}, 1.0\ns_mov_b32 s{sOne+1}, 1.0\ns_movk_i32 s{sK128}, 128")
    A(f"s_lshl_b32 s{sStg}, s{sW}, 12\ns_add_u32 s{sStg}, s{sStg}, {STG}")
    A(f"v_bfe_u32 v{t}, v{L}, 3, 2\nv_bfe_u32 v{t+1}, v{L}, 1, 1\nv_lshl_or_b32 v{t+1}, v{t}, 1, v{t+1}")
    A(f"v_bfe_u32 v{t+2}, v{L}, 2, 1\nv_and_b32 v{t+3}, 1, v{L}\nv_lshl_or_b32 v{t+2}, v{t+2}, 1, v{t+3}")
    A(f"v_lshl_or_b32 v{t+4}, v{t}, 1, v{t+3}")
    A(f"v_lshrrev_b32 v{t+5}, 5, v{L}")
    A(f"v_lshl_add_u32 v{t+6}, v{t+2}, 3, v{t+1}\nv_lshlrev_b32 v{t+6}, 7, v{t+6}\nv_add_u32 v{t+6}, s{sStg}, v{t+6}")
    for s in range(4):
        A(f"v_or_b32 v{t+7}, {2*s}, v{t+5}\nv_xor_b32 v{t+7}, v{t+7}, v{t+4}\nv_lshl_add_u32 v{aA+s}, v{t+7}, 4, v{t+6}")
    A(f"v_lshl_add_u32 v{t+7}, v{t+1}, 2, v{t+2}\nv_lshlrev_b32 v{t+7}, 2, v{t+7}\nv_lshlrev_b32 v{t+7}, v{t+5}, v{t+7}")
    A(f"v_mov_b32 v{t+8}, {EE-KEY-2}\nv_mad_u32_u24 v{t+7}, v{t+5}, v{t+8}, v{t+7}\nv_add_u32 v{aX}, {KEY+2}, v{t+7}")
    A(f"v_mov_b32 v{incX}, 128\nv_lshlrev_b32 v{incX}, v{t+5}, v{incX}")
    A(f"v_lshrrev_b32 v{t+7}, 3, v{L}\nv_lshlrev_b32 v{aIdx}, 4, v{t+7}\nv_add_u32 v{aIdx}, {KEY}, v{aIdx}")
    A(f"v_and_b32 v{t+7}, 6, v{t+7}\nv_and_b32 v{t+8}, 7, v{L}\nv_xor_b32 v{t+7}, v{t+7}, v{t+8}\nv_lshlrev_b32 v{chE}, 4, v{t+7}\nv_xor_b32 v{chO}, 16, v{chE}")
    A(f"v_bfe_u32 v{t+7}, v{L}, 4, 1\nv_and_b32 v{t+8}, 3, v{L}\nv_lshlrev_b32 v{t+7}, 5, v{t+7}\nv_lshl_add_u32 v{t+7}, v{t+8}, 3, v{t+7}\nv_add_u32 v{cQ}, {QQ}, v{t+7}")
    A(f"v_bfe_u32 v{t+7}, v{L}, 2, 2\nv_mul_u32_u24 v{t+8}, {RS}, v{t+7}\nv_add_u32 v{t+8}, v{t+8}, v{cQ}")
    A(f"v_add_u32 v{aQe}, {100*RS}, v{t+8}\nv_add_u32 v{aQo}, {104*RS}, v{t+8}")
    A(f"v_lshlrev_b32 v{cSn}, 2, v{t+7}\nv_add_u32 v{cSn}, {SNODE}, v{cSn}")
    A(f"v_lshlrev_b32 v{cFl}, 3, v{t+5}\nv_add_u32 v{cFl}, {SNODE}, v{cFl}")
    A(f"v_and_b32 v{t+7}, 31, v{L}\nv_lshlrev_b32 v{cS}, 3, v{t+7}\nv_add_u32 v{cS}, {SS}, v{cS}")
    A(f"s_lshl_b32 s{sT4}, s{sW}, 11\ns_add_u32 s{sT4}, s{sT4}, {TT}\nv_lshlrev_b32 v{aT}, 5, v{L}\nv_add_u32 v{aT}, s{sT4}, v{aT}")


B2R, SFR, OACC = 108, 124, 156
eN, eS, eC, eO, eD = 66, 67, 68, 69, 70
def epi_consts(A):
    L = vLane
    A(f"v_lshrrev_b32 v{eD}, 5, v{L}")
    A(f"s_lshr_b32 s{sT2}, s{sW}, 1\ns_lshl_b32 s{sT2}, s{sT2}, 5\nv_and_b32 v{eN}, 31, v{L}\nv_add_u32 v{eN}, s{sT2}, v{eN}")
    A(f"v_min_u32 v{eS}, 99, v{eN}\nv_lshlrev_b32 v{eC}, 2, v{eS}\nv_mul_u32_u24 v{eS}, {RS}, v{eS}\nv_lshl_add_u32 v{eS}, v{eD}, 4, v{eS}\nv_add_u32 v{eS}, {SS}, v{eS}")
    A(f"v_lshlrev_b32 v{eO}, 7, v{eN}\nv_lshl_add_u32 v{eO}, v{eD}, 3, v{eO}")
    A(f"s_and_b32 s{sT4}, s{sW}, 1\ns_lshl_b32 s{sT3}, s{sT4}, 7\nv_lshl_add_u32 v71, v{eD}, 4, s{sT3}")
    A(f"s_lshl_b32 s{sT3}, s{sN0}, 7\ns_lshl_b32 s{sT4}, s{sT4}, 6\ns_add_u32 s{sT3}, s{sT3}, s{sT4}\nv_add_u32 v{eO}, s{sT3}, v{eO}")
def epi_pre(A):
    A(f"ds_read_b32 v{eD}, v{eC} offset:{CNT}")
    for q in range(4): A(f"ds_read_b128 {vr(B2R+4*q,4)}, v71 offset:{B2F+32*q}")
    A("s_waitcnt lgkmcnt(0)")
    A(f"v_lshrrev_b32 v{eD}, 4, v{eD}\nv_cvt_f32_u32 v{eD}, v{eD}")
    for r in range(16): A(f"v_mul_f32 v{B2R+r}, v{eD}, v{B2R+r}")
def epi_reads(A):
    for s in range(8): A(f"ds_read_b128 {vr(SFR+4*s,4)}, v{eS} offset:{32*s}")
def epi_compute(A, cfg):
    for s in range(8):
        A(f"s_waitcnt lgkmcnt({7-s})")
        A(mfma(OACC, W2R + 4 * s, SFR + 4 * s, None if s == 0 else OACC))
    A(f"s_mov_b32 s{sT0}, 0xbf317218\nv_cmp_gt_u32 vcc, {NPB}, v{eN}")
    A.nop(10)
    for q in range(4):
        for k in range(4): A(f"v_fmac_f32 v{B2R+4*q+k}, s{sT0}, v{OACC+4*q+k}")
        A(f"v_cvt_pk_bf16_f32 v{B2R+4*q}, v{B2R+4*q}, v{B2R+4*q+1}\nv_cvt_pk_bf16_f32 v{B2R+4*q+1}, v{B2R+4*q+2}, v{B2R+4*q+3}")
    A("s_mov_b64 exec, vcc\ns_waitcnt vmcnt(0)")
    for q in range(4):
        A(f"buffer_store_dwordx2 {pr(B2R+4*q)}, v{eO}, {sr(SRD_OUT,4)}, 0 offen offset:{16*q}")
    A(EXALL)

def spin_guard(A, lbl):
    A(f"s_sub_u32 s{sSpin}, s{sSpin}, 1\ns_cmp_lg_u32 s{sSpin}, 0\ns_cbranch_scc1 {lbl}\ns_endpgm")

def tr_addr(A, dst, base, t):
    L = vLane
    A(f"v_bfe_u32 v{t}, v{L}, 2, 2\nv_lshrrev_b32 v{t+1}, 5, v{L}\nv_lshl_add_u32 v{t+1}, v{t+1}, 3, v{t}\nv_lshlrev_b32 v{t+1}, 8, v{t+1}")
    A(f"v_bfe_u32 v{t+2}, v{L}, 4, 1\nv_lshl_add_u32 v{t+1}, v{t+2}, 5, v{t+1}\nv_and_b32 v{t+2}, 3, v{L}\nv_lshl_add_u32 v{t+1}, v{t+2}, 3, v{t+1}\nv_add_u32 v{t+1}, {base}, v{t+1}")
    for b in range(4):
        A(f"v_xor_b32 v{t+2}, {b}, v{t}\nv_lshl_add_u32 v{dst+b}, v{t+2}, 6, v{t+1}")

def load_w_frags(A, trA):
    for b in range(4):
        for s in range(4):
            for i in range(2):
                A(f"ds_read_b64_tr_b16 {pr(Wf(b,s)+2*i)}, v{trA+b} offset:{4096*s+1024*i}")

def schedule(A):
    L = vLane
    d0, d1, b0, b1, r0, r1, h, sc, p0, p1, n0, n1, a0, a1, i0, i1 = range(176, 192)
    one, la4, mx, s0, s1 = 66, 67, 68, 69, 70
    A(f"v_lshlrev_b32 v{la4}, 2, v{L}")
    A(f"ds_read2st64_b32 v[{d0}:{d1}], v{la4} offset0:{CNT//256} offset1:{CNT//256+1}")
    A(f"s_mov_b32 s{sT0}, -1\ns_mov_b32 s{sT1}, 15\nv_mov_b32 v{one}, 1")
    A(f"v_mul_u32_u24 v{n0}, {RS}, v{L}\nv_add_u32 v{n1}, {64*RS}, v{n0}")
    A("s_waitcnt lgkmcnt(0)")
    for i in range(2):
        A(f"v_lshrrev_b32 v{d0+i}, 4, v{d0+i}\nv_min_u32 v{b0+i}, 63, v{d0+i}\nv_sub_u32 v{b0+i}, 63, v{b0+i}\nv_lshlrev_b32 v{b0+i}, 2, v{b0+i}")
    A(f"ds_add_rtn_u32 v{r0}, v{b0}, v{one} offset:{HIST}")
    A(f"s_mov_b64 exec, {sr(sT0,2)}\nds_add_rtn_u32 v{r1}, v{b1}, v{one} offset:{HIST}\n{EXALL}")
    A(f"ds_read_b32 v{h}, v{la4} offset:{HIST}")
    A(f"s_waitcnt lgkmcnt(0)\nv_mov_b32 v{sc}, v{h}")
    wave_scan(A, [(sc, "v_add_u32")])
    A(f"v_sub_u32 v{sc}, v{sc}, v{h}")
    A(f"ds_bpermute_b32 v{p0}, v{b0}, v{sc}\nds_bpermute_b32 v{p1}, v{b1}, v{sc}")
    A("s_waitcnt lgkmcnt(0)")
    for i in range(2):
        A(f"v_add_u32 v{p0+i}, v{p0+i}, v{r0+i}")
        A(f"v_and_b32 v{a0+i}, -4, v{p0+i}\nv_lshlrev_b32 v{s0+i}, 2, v{p0+i}")
    A(f"ds_max_u32 v{a0}, v{d0} offset:{LRUN}\nds_write_b32 v{s0}, v{n0} offset:{SNODE}")
    A(f"s_mov_b64 exec, {sr(sT0,2)}\nds_max_u32 v{a1}, v{d1} offset:{LRUN}\nds_write_b32 v{s1}, v{n1} offset:{SNODE}\n{EXALL}")
    A(f"ds_read_b32 v{h}, v{la4} offset:{LRUN}")
    for i in range(2):
        A(f"v_and_b32 v{i0+i}, 7, v{p0+i}\nv_lshlrev_b32 v{i0+i}, 20, v{i0+i}\nv_add_u32 v{i0+i}, 0x100000, v{i0+i}")
        A(f"v_and_b32 v{s0+i}, 12, v{s0+i}\nv_or_b32 v{i0+i}, v{i0+i}, v{s0+i}")
    A(f"s_waitcnt lgkmcnt(0)\nv_mov_b32 v{sc}, v{h}\nv_mov_b32 v{mx}, v{h}")
    wave_scan(A, [(sc, "v_add_u32"), (mx, "v_max_u32")])
    A(f"v_sub_u32 v{sc}, v{sc}, v{h}")
    A(f"ds_bpermute_b32 v{p0}, v{a0}, v{sc}\nds_bpermute_b32 v{p1}, v{a1}, v{sc}")
    A(f"v_cmp_gt_u32 vcc, 26, v{L}\nv_mov_b32 v{r0}, 0x7fffffff\nv_mov_b32 v{r1}, {LMAXA}\nv_cndmask_b32 v{sc}, v{r0}, v{sc}, vcc")
    A(f"ds_write_b32 v{la4}, v{sc} offset:{START}")
    A(f"s_mov_b32 s{sT2}, 0\ns_brev_b32 s{sT3}, 1\ns_mov_b64 exec, {sr(sT2,2)}\nds_write_b32 v{r1}, v{mx}\n{EXALL}")
    A("s_waitcnt lgkmcnt(2)")
    for i in range(2): A(f"v_lshl_add_u32 v{i0+i}, v{p0+i}, 4, v{i0+i}")
    A(f"ds_write2st64_b32 v{la4}, v{i0}, v{i1} offset0:{INFO//256} offset1:{INFO//256+1}")
    A(f"v_mov_b32 v{r1}, {SDONE}\ns_mov_b64 exec, 1\nds_write_b32 v{r1}, v{one}\n{EXALL}")

def arrive(A, ctr, dsts):
    A(f"v_mov_b32 v{vtmp}, {ctr}\nv_mov_b32 v{vtmp+1}, 1\ns_mov_b64 exec, 1\nds_add_rtn_u32 v{vtmp+1}, v{vtmp}, v{vtmp+1}\n{EXALL}")
    A(f"s_waitcnt lgkmcnt(0)\nv_readfirstlane_b32 s{dsts}, v{vtmp+1}")

def gen(cfg):
    A = Asm(); CFG.clear(); CFG.update(cfg)
    L = vLane
    PL = cfg.get("pld", "sc1")
    RL = cfg.get("rld", "sc1")
    RSt = cfg.get("rst", "sc1")
    def stp(i, both=False):
        if cfg.get("stamps") and both and cfg.get("cyc"):
            A(f"s_memrealtime s[{SST}:{SST+1}]\ns_waitcnt lgkmcnt(0)\nv_writelane_b32 v72, s{SST}, {40+i}\nv_writelane_b32 v73, s{SST+1}, {40+i}")
        if cfg.get("stamps"):
            A(f"{'s_memtime' if cfg.get('cyc') else 's_memrealtime'} s[{SST}:{SST+1}]\ns_waitcnt lgkmcnt(0)\nv_writelane_b32 v72, s{SST}, {i}\nv_writelane_b32 v73, s{SST+1}, {i}")
    A("s_cmp_ge_u32 s2, 256\ns_cbranch_scc1 M_END")
    A("s_load_dwordx16 s[4:19], s[0:1], 0\ns_load_dwordx4 s[20:23], s[0:1], 64\ns_load_dwordx2 s[24:25], s[0:1], 80")
    A(f"v_and_b32 v{L}, 63, v0\nv_lshrrev_b32 v2, 6, v0")
    A(f"s_and_b32 s{sE0}, s2, 7\ns_lshr_b32 s{sB}, s2, 3\ns_lshl_b32 s{sE0}, s{sE0}, 5\ns_add_u32 s{sB}, s{sB}, s{sE0}")
    A(f"v_readfirstlane_b32 s{sW}, v2")
    A(f"s_mul_i32 s{sN0}, s{sB}, {NPB}\ns_mov_b32 s{sSpin}, 0x100000\ns_mov_b32 s{sEdone}, 0")
    if cfg.get("stamps"): A("v_mov_b32 v72, 0\nv_mov_b32 v73, 0")
    DST, SRC, EV, BK, RKP = 76, 84, 92, 108, 116
    o16, o32 = 124, 125
    A(f"v_lshlrev_b32 v{o16}, 4, v0\nv_lshlrev_b32 v{o32}, 5, v0")
    A(f"s_mul_i32 s{sE0}, s2, {CH}\ns_sub_u32 s{sE1}, {E}, s{sE0}\ns_min_u32 s{sE1}, s{sE1}, {CH}\ns_lshr_b32 s{sE1}, s{sE1}, 2")
    A(f"s_sub_u32 s{sE2}, s{sE1}, 448\nv_cmp_gt_u32 {sr(sMB,2)}, s{sE2}, v0")
    A(f"s_lshl_b32 s60, s{sE0}, 2\ns_add_u32 s61, s60, 7168\ns_lshl_b32 s62, s{sE0}, 3\ns_add_u32 s63, s62, 14336")
    o16b, o32b = 154, 155
    A(f"v_bfrev_b32 v66, 2\nv_cndmask_b32 v{o16b}, v66, v{o16}, {sr(sMB,2)}\nv_lshlrev_b32 v{o32b}, 1, v{o16b}")
    stp(0)
    A("s_waitcnt lgkmcnt(0)")
    A(f"s_cmp_eq_u32 s{sW}, 7\ns_cbranch_scc1 SVC_START")
    srd(A, SRD_A, 10, E * 4)
    A(f"buffer_load_dwordx4 {vr(DST,4)}, v{o16}, {sr(SRD_A,4)}, s60 offen")
    A(f"buffer_load_dwordx4 {vr(DST+4,4)}, v{o16b}, {sr(SRD_A,4)}, s61 offen")
    srd(A, SRD_B, 8, E * 4); srd(A, SRD_C, 6, E * 8)
    A("s_branch COMMON1")
    A.label("SVC_START")
    sv = 126
    srd(A, SRD_C, 22, 256)
    A("s_cmp_lg_u32 s2, 0\ns_cbranch_scc1 SVC_NONONCE")
    A(f"s_memrealtime s[64:65]\ns_waitcnt lgkmcnt(0)\ns_or_b32 s64, s64, 1\nv_mov_b32 v{sv}, s64\ns_mov_b64 exec, 1")
    A(f"buffer_store_dword v{sv}, off, {sr(SRD_C,4)}, 0 sc1\n{EXALL}")
    A.label("SVC_NONONCE")
    srd(A, SRD_A, 16, 128 * 64 * 2); srd(A, SRD_B, 12, 132 * 128 * 2)
    A(f"v_lshlrev_b32 v{sv}, 4, v{L}")
    for q in range(4):
        A(f"v_xor_b32 v{sv+1}, {q<<6}, v{sv}\ns_movk_i32 s64, {q*4096}\ns_mov_b32 m0, {W2RAW+q*4096}\ns_nop 0")
        for i in range(4): A(f"buffer_load_dwordx4 v{sv+1}, {sr(SRD_A,4)}, s64 offen offset:{1024*i} lds")
    A(f"v_bfe_u32 v{sv+1}, v{L}, 4, 2\nv_lshlrev_b32 v{sv+1}, 6, v{sv+1}\nv_xor_b32 v{sv+1}, v{sv+1}, v{sv}")
    for q in range(4):
        A(f"s_movk_i32 s64, {q*4096}")
        for i in range(4): A(f"buffer_load_dwordx4 {vr(W0+16*q+4*i,4)}, v{sv+1}, {sr(SRD_B,4)}, s64 offen offset:{1024*i}")
    for q in range(4):
        A(f"s_movk_i32 s64, {16384+q*4096}\ns_mov_b32 m0, {WBR+q*4096}\ns_nop 0")
        for i in range(4): A(f"buffer_load_dwordx4 v{sv+1}, {sr(SRD_B,4)}, s64 offen offset:{1024*i} lds")
    A(f"s_mov_b32 s64, 32768\nbuffer_load_dwordx4 v[76:79], v{sv}, {sr(SRD_B,4)}, s64 offen")
    srd(A, SRD_A, 14, 256); srd(A, SRD_B, 18, 128)
    A(f"v_lshlrev_b32 v{sv+2}, 2, v{L}")
    A(f"buffer_load_dword v80, v{sv+2}, {sr(SRD_A,4)}, 0 offen\nbuffer_load_dword v81, v{sv+2}, {sr(SRD_B,4)}, 0 offen")
    A.label("COMMON1")
    srd(A, SRD_X, 4, N * 128); srd(A, SRD_OUT, 20, N * 128)
    srd(A, SRD_KEYS, 24, 256 * CS * 4, WS_KEYS); srd(A, SRD_EREC, 24, 256 * CS * 8, WS_EREC); srd(A, SRD_GRAN, 24, EFLG_OFF + 256 * 128, WS_GRAN)
    A("v_lshlrev_b32 v66, 2, v0")
    A("v_subrev_u32 v68, 4, v0\nv_lshrrev_b32 v69, 3, v68\nv_and_b32 v70, 3, v0")
    A("v_cmp_eq_u32 vcc, v69, v70\nv_and_b32 v68, 4, v68\nv_lshlrev_b32 v68, 2, v68")
    A("v_mov_b32 v69, 0x3f80\nv_lshlrev_b32 v69, v68, v69\nv_cndmask_b32 v69, 0, v69, vcc")
    A("ds_write_b32 v66, v69")
    A(f"v_subrev_u32 v68, {LRUN//4-512}, v0\nv_cmp_gt_u32 vcc, 25, v68\nv_mov_b32 v70, 0\ns_nop 0\nv_cndmask_b32 v69, 0, 8, vcc")
    A("ds_write_b32 v66, v69 offset:2048")
    A(f"ds_write_b32 v66, v70 offset:4096")
    A(f"s_lshl_b32 s64, s{sE1}, 4\ns_add_u32 s64, s64, {P_KEY}\nv_lshl_add_u32 v68, v{L}, 2, s64\nv_mov_b32 v69, -1\ns_mov_b64 exec, 15\nds_write_b32 v68, v69\n{EXALL}")
    A("s_waitcnt lgkmcnt(0)\ns_barrier")
    stp(1)
    XB = 128
    A(f"s_cmp_eq_u32 s{sW}, 7\ns_cbranch_scc1 NOEDGE1")
    A(f"buffer_load_dwordx4 {vr(SRC,4)}, v{o16}, {sr(SRD_B,4)}, s60 offen")
    A(f"buffer_load_dwordx4 {vr(SRC+4,4)}, v{o16b}, {sr(SRD_B,4)}, s61 offen")
    A.label("NOEDGE1")
    if cfg.get("b1b", 1): A("s_barrier")
    A(f"s_cmp_eq_u32 s{sW}, 7\ns_cbranch_scc1 NOEDGE2")
    A(f"buffer_load_dwordx4 {vr(EV,4)}, v{o32}, {sr(SRD_C,4)}, s62 offen\nbuffer_load_dwordx4 {vr(EV+4,4)}, v{o32}, {sr(SRD_C,4)}, s62 offen offset:16")
    A(f"buffer_load_dwordx4 {vr(EV+8,4)}, v{o32b}, {sr(SRD_C,4)}, s63 offen\nbuffer_load_dwordx4 {vr(EV+12,4)}, v{o32b}, {sr(SRD_C,4)}, s63 offen offset:16")
    A.label("NOEDGE2")
    A(f"s_cmp_lt_u32 s{sW}, 4\ns_cbranch_scc1 NOXB")
    A(f"v_and_b32 v66, 31, v{L}\nv_lshrrev_b32 v67, 5, v{L}\nv_lshlrev_b32 v66, 7, v66\nv_lshl_add_u32 v66, v67, 4, v66")
    A(f"s_sub_u32 s64, s{sW}, 4\ns_lshl_b32 s64, s64, 5\ns_add_u32 s64, s64, s{sN0}\ns_lshl_b32 s64, s64, 7")
    for s in range(4): A(f"buffer_load_dwordx4 {vr(XB+4*s,4)}, v66, {sr(SRD_X,4)}, s64 offen offset:{32*s}")
    A.label("NOXB")
    loop_consts(A)
    A(f"s_cmp_eq_u32 s{sW}, 7\ns_cbranch_scc1 SVC_MID")
    A(f"s_mov_b32 s64, 42800\nv_mov_b32 v66, 1")
    A(f"s_cmp_lt_u32 s{sW}, 4\ns_cbranch_scc1 WD_C\ns_waitcnt vmcnt(10)\ns_branch WD_J")
    A.label("WD_C"); A("s_waitcnt vmcnt(6)"); A.label("WD_J")
    stp(2)
    for i in range(8):
        if i == 4: A(f"s_mov_b64 exec, {sr(sMB,2)}")
        A(f"v_mul_u32_u24 v{BK+i}, s64, v{DST+i}\nv_lshrrev_b32 v{BK+i}, 22, v{BK+i}\nv_lshlrev_b32 v{BK+i}, 2, v{BK+i}")
        A(f"ds_add_rtn_u32 v{RKP+i}, v{BK+i}, v66 offset:{P_CNT}")
    A(EXALL)
    A(f"v_lshlrev_b32 v67, 4, v{L}")
    A("s_waitcnt lgkmcnt(0)\ns_barrier")
    stp(3)
    C0, BS, GR = 144, 148, 160
    A(f"ds_read_b128 {vr(C0,4)}, v67 offset:{P_CNT}")
    A("s_waitcnt lgkmcnt(0)")
    A(f"v_add_u32 v{BS+1}, v{C0}, v{C0+1}\nv_add_u32 v{BS+2}, v{BS+1}, v{C0+2}\nv_add_u32 v152, v{BS+2}, v{C0+3}\nv_sub_u32 v153, {P_KEY//4}, v152")
    wave_scan(A, [(152, "v_add_u32")])
    A(f"v_add_u32 v{BS}, v152, v153")
    A(f"v_add_u32 v{BS+3}, v{BS}, v{BS+2}\nv_add_u32 v{BS+2}, v{BS}, v{BS+1}\nv_add_u32 v{BS+1}, v{BS}, v{C0}")
    A(f"ds_write_b128 v67, {vr(BS,4)} offset:{P_BASE}")
    for i in range(8):
        if i == 4: A(f"s_mov_b64 exec, {sr(sMB,2)}")
        A(f"ds_read_b32 v{BK+i}, v{BK+i} offset:{P_BASE}")
    A(EXALL)
    A(f"s_mul_i32 s64, s2, {CS}\ns_sub_u32 s64, s64, {P_KEY//4}\ns_mov_b32 s65, {hex((P_E - 2*P_KEY) & 0xffffffff)}")
    for i in range(4):
        A(f"v_add_u32 v{GR+2*i}, s64, v{BS+i}\nv_lshl_or_b32 v{GR+2*i}, v{C0+i}, 20, v{GR+2*i}")
    A(f"s_cmp_lt_u32 s{sW}, 4\ns_cbranch_scc1 WS_C\ns_waitcnt vmcnt(8) lgkmcnt(0)\ns_branch WS_J")
    A.label("WS_C"); A("s_waitcnt vmcnt(4) lgkmcnt(0)"); A.label("WS_J")
    stp(4)
    for i in range(8):
        if i == 4: A(f"s_mov_b64 exec, {sr(sMB,2)}")
        A(f"v_add_lshl_u32 v{BK+i}, v{BK+i}, v{RKP+i}, 2\nv_lshl_or_b32 v{SRC+i}, v{DST+i}, 16, v{SRC+i}")
        A(f"ds_write_b32 v{BK+i}, v{SRC+i}")
    A(EXALL)
    A("s_waitcnt lgkmcnt(0)\ns_barrier")
    stp(5)
    A(f"s_cmp_ge_u32 s{sW}, 4\ns_cbranch_scc1 NOKCOPY")
    A(f"v_add_u32 v66, {P_KEY}, v{o16}\ns_mul_i32 s66, s2, {CS*4}\ns_add_u32 s67, s66, 4096\ns_add_u32 s68, s66, 8192\ns_add_u32 s69, s66, 12288")
    for i in range(3): A(f"ds_read_b128 {vr(DST+4*i,4)}, v66 offset:{4096*i}")
    A(f"s_cmp_lg_u32 s{sW}, 0\ns_cbranch_scc1 KC3")
    A(f"s_mov_b64 exec, 0xffff\nds_read_b128 {vr(DST+12,4)}, v66 offset:12288\ns_waitcnt lgkmcnt(0)")
    A(f"buffer_store_dwordx4 {vr(DST+12,4)}, v{o16}, {sr(SRD_KEYS,4)}, s69 offen {RSt}\n{EXALL}")
    A.label("KC3")
    for i in range(3):
        A(f"s_waitcnt lgkmcnt({2-i})\nbuffer_store_dwordx4 {vr(DST+4*i,4)}, v{o16}, {sr(SRD_KEYS,4)}, s{66+i} offen {RSt}")
    A.label("NOKCOPY")
    w2_frags(A)
    for i in range(8): A(f"v_lshl_add_u32 v{BK+i}, v{BK+i}, 1, s65")
    A(f"s_sub_u32 s64, s{sW}, 1\ns_cmp_lt_u32 s64, 3\ns_cbranch_scc1 WE_3\ns_waitcnt vmcnt(4)\ns_branch WE_J")
    A.label("WE_3"); A("s_waitcnt vmcnt(3)"); A.label("WE_J")
    stp(6)
    for i in range(8):
        if i == 4: A(f"s_mov_b64 exec, {sr(sMB,2)}")
        A(f"ds_write_b64 v{BK+i}, {pr(EV+2*i)}")
    A(EXALL)
    A("s_branch PRE_B4")
    A.label("SVC_MID")
    A("s_barrier")
    A("s_waitcnt vmcnt(39)\ns_barrier")
    w2_frags(A)
    A(f"s_mov_b32 s64, {NEG_L2E}\ns_mov_b32 s65, 0xffff0000\nv_add_u32 v{sv+1}, {WA}, v{sv}")
    A("s_waitcnt vmcnt(23)")
    for i in range(16):
        for k in range(4):
            r = W0 + 4 * i + k
            A(f"v_lshlrev_b32 v66, 16, v{r}\nv_and_b32 v67, s65, v{r}\nv_mul_f32 v66, s64, v66\nv_mul_f32 v67, s64, v67\nv_cvt_pk_bf16_f32 v{r}, v66, v67")
        A(f"ds_write_b128 v{sv+1}, {vr(W0+4*i,4)} offset:{1024*i}")
    A("s_waitcnt vmcnt(4)")
    for k in range(4):
        A(f"v_lshlrev_b32 v66, 16, v{76+k}\nv_and_b32 v67, s65, v{76+k}\nv_mul_f32 v66, s64, v66\nv_mul_f32 v67, s64, v67\nv_cvt_pk_bf16_f32 v{84+k}, v66, v67")
        A(f"v_lshlrev_b32 v68, 16, v{84+k}\nv_and_b32 v69, s65, v{84+k}\nv_sub_f32 v66, v66, v68\nv_sub_f32 v67, v67, v69\nv_cvt_pk_bf16_f32 v{88+k}, v66, v67")
    A(f"v_lshrrev_b32 v66, 4, v{L}\nv_mul_u32_u24 v66, {RS}, v66\nv_and_b32 v67, 15, v{L}\nv_lshl_add_u32 v66, v67, 4, v66\nv_add_u32 v66, {QQ+100*RS}, v66")
    A(f"ds_write_b128 v66, v[84:87]\nds_write_b128 v66, v[88:91] offset:{4*RS}")
    A(f"v_lshlrev_b32 v92, 16, v80\nv_and_b32 v93, s65, v80\nv_lshlrev_b32 v94, 16, v81\nv_and_b32 v95, s65, v81\nv_lshlrev_b32 v66, 3, v{L}")
    A(f"ds_write_b64 v66, v[92:93] offset:{B1F}\n{EXLO}\nds_write_b64 v66, v[94:95] offset:{B2F}\n{EXALL}")
    A.label("SVC_NPOLL")
    A(f"buffer_load_dword v66, off, {sr(SRD_C,4)}, 0 {PL}\ns_waitcnt vmcnt(0)\nv_readfirstlane_b32 s64, v66\ns_cmp_lg_u32 s64, 0\ns_cbranch_scc1 SVC_NGOT")
    spin_guard(A, "SVC_NPOLL")
    A.label("SVC_NGOT")
    A(f"v_mov_b32 v67, {NONCE}\nds_write_b32 v67, v66")
    A.label("PRE_B4")
    A("s_waitcnt lgkmcnt(0)\ns_barrier")
    stp(7)
    trA = 176
    A(f"s_cmp_ge_u32 s{sW}, 4\ns_cbranch_scc1 AUX_START")
    KO, KEYR, CA, RK, IN, ER = 76, 84, 100, 116, 132, 160
    MKA = 148
    A(f"v_mov_b32 v66, {NONCE}\nds_read_b32 v67, v66")
    A(f"s_lshl_b32 s64, s{sW}, 11\ns_add_u32 s64, s64, {P_KEY}\nv_lshl_add_u32 v68, v{L}, 4, s64\nv_lshl_add_u32 v{MKA}, v{L}, 2, s64")
    A("v_mov_b64 v[152:153], 0\nv_mov_b64 v[154:155], 0\nds_write_b128 v68, v[152:155]\nds_write_b128 v68, v[152:155] offset:1024")
    A("s_waitcnt lgkmcnt(2)")
    A(f"v_readfirstlane_b32 s{sNonce}, v67")
    for i in range(4): A(f"v_mov_b32 v{GR+2*i+1}, v67")
    A(f"v_lshlrev_b32 v69, 5, v{L}\ns_lshl_b32 s65, s2, 11")
    A("s_waitcnt vmcnt(0)")
    arrive(A, KCTR, sT0)
    A(f"s_cmp_lg_u32 s{sT0}, 3\ns_cbranch_scc1 NOPUB")
    A(f"buffer_store_dwordx4 {vr(GR,4)}, v69, {sr(SRD_GRAN,4)}, s65 offen sc1\nbuffer_store_dwordx4 {vr(GR+4,4)}, v69, {sr(SRD_GRAN,4)}, s65 offen offset:16 sc1")
    A.label("NOPUB")
    stp(8)
    tr_addr(A, trA, WA, 66)
    load_w_frags(A, trA)
    A(f"v_lshlrev_b32 v149, 11, v{L}\ns_lshl_b32 s65, s{sW}, 17\ns_lshl_b32 s66, s{sB}, 3\ns_add_u32 s65, s65, s66")
    A(f"v_lshlrev_b32 v150, 7, v{L}\ns_lshl_b32 s{sE0}, s{sW}, 13\ns_add_u32 s{sE0}, s{sE0}, {EFLG_OFF}")
    A(f"v_lshlrev_b32 v151, 3, v{L}\nv_subrev_u32 v151, 4096, v151\nv_bfrev_b32 v153, 2")
    A.label("GPOLL")
    A(f"buffer_load_dwordx2 v[66:67], v149, {sr(SRD_GRAN,4)}, s65 offen {PL}\ns_waitcnt vmcnt(0)")
    A(f"v_cmp_eq_u32 vcc, s{sNonce}, v67\ns_cmp_eq_u64 vcc, -1\ns_cbranch_scc1 GGOT")
    spin_guard(A, "GPOLL")
    A.label("GGOT")
    stp(9)
    A("v_lshrrev_b32 v67, 20, v66\nv_and_b32 v66, 0xfffff, v66\nv_add_u32 v67, 1, v67\nv_lshrrev_b32 v67, 1, v67\nv_mov_b32 v68, v67")
    wave_scan(A, [(68, "v_add_u32")])
    A(f"v_sub_u32 v69, v68, v67\nv_lshlrev_b32 v66, 2, v66\nv_readlane_b32 s{sT5}, v68, 63")
    A("v_lshlrev_b32 v70, 3, v69\nv_sub_u32 v66, v66, v70\nv_add_u32 v66, 4096, v66\nv_lshl_add_u32 v70, v69, 2, s64")
    A("v_cmpx_lt_u32 vcc, 0, v67\nv_cmpx_gt_u32 vcc, 512, v69\nds_write_b32 v70, v66")
    A(EXALL)
    for p in range(0, 8, 2): A(f"ds_read2st64_b32 {pr(KO+p)}, v{MKA} offset0:{p} offset1:{p+1}")
    A(f"s_cmp_le_u32 s{sT5}, 512\ns_cbranch_scc1 NOOVF")
    A(f"v_mov_b32 v66, {FBF}\nv_mov_b32 v67, 1\nds_write_b32 v66, v67\ns_movk_i32 s{sT5}, 0")
    A.label("NOOVF")
    for p in range(8):
        A(f"s_sub_u32 s{sT4}, s{sT5}, {64*p}\nv_cmp_gt_i32 {sr(MASK+4*p,2)}, s{sT4}, v{L}")
    A("s_waitcnt lgkmcnt(0)")
    wave_scan(A, [(KO + p, "v_max_u32") for p in range(8)])
    A.nop(1)
    cs_ = [sT0, sT1, sT2, sT3, sG0, sG1, sR]
    for p in range(7): A(f"v_readlane_b32 s{cs_[p]}, v{KO+p}, 63")
    for p in range(8):
        if p >= 2: A(f"s_max_u32 s{cs_[p-1]}, s{cs_[p-1]}, s{cs_[p-2]}")
        if p >= 1: A(f"v_max_u32 v{KO+p}, s{cs_[p-1]}, v{KO+p}")
        A(f"v_add_u32 v{KO+p}, v{KO+p}, v151\nv_cndmask_b32 v{KO+p}, v153, v{KO+p}, {sr(MASK+4*p,2)}")
        A(f"buffer_load_dwordx2 {pr(KEYR+2*p)}, v{KO+p}, {sr(SRD_KEYS,4)}, 0 offen offset:{512*p} {RL}")
    for p in range(8): A(f"v_lshlrev_b32 v{KO+p}, 1, v{KO+p}")
    A(f"s_lshl_b32 s{sT0}, s{sN0}, 2\ns_sub_u32 s{sT0}, {CNT}, s{sT0}\nv_mov_b32 v66, 16\ns_movk_i32 s{sT1}, {CNT+4*NPB}")
    stp(10)
    for p in range(8):
        A(f"s_waitcnt vmcnt({7-p})")
        A(f"s_mov_b64 exec, {sr(MASK+4*p,2)}")
        A(f"v_mad_u32_u16 v{CA+2*p}, v{KEYR+2*p}, 4, s{sT0} op_sel:[1,0,0,0]\nv_mad_u32_u16 v{CA+2*p+1}, v{KEYR+2*p+1}, 4, s{sT0} op_sel:[1,0,0,0]")
        A(f"ds_add_rtn_u32 v{RK+2*p}, v{CA+2*p}, v66")
        A(f"v_cmpx_gt_u32 {sr(MASK+4*p+2,2)}, s{sT1}, v{CA+2*p+1}")
        A(f"ds_add_rtn_u32 v{RK+2*p+1}, v{CA+2*p+1}, v66")
    A(EXALL)
    A(f"buffer_load_dword v152, v150, {sr(SRD_GRAN,4)}, s{sE0} offen {PL}")
    arrive(A, SCTR, sT0)
    stp(11)
    A(f"s_cmp_lg_u32 s{sT0}, 7\ns_cbranch_scc1 C_SPIN")
    schedule(A)
    A.label("C_SPIN")
    A(f"v_mov_b32 v66, {SDONE}\nds_read_b32 v67, v66\ns_waitcnt lgkmcnt(0)\nv_readfirstlane_b32 s{sT0}, v67\ns_cmp_lg_u32 s{sT0}, 0\ns_cbranch_scc1 C_SGOT")
    spin_guard(A, "C_SPIN")
    A.label("C_SGOT")
    stp(12)
    A(f"v_lshlrev_b32 v66, 2, v{L}\nv_mov_b32 v67, {FBF}")
    A(f"ds_read_b32 v{vStart}, v66 offset:{START}\nds_read_b32 v68, v67")
    for k in range(16):
        A(f"s_mov_b64 exec, {sr(MASK+2*k,2)}\nds_read_b32 v{IN+k}, v{CA+k} offset:{INFO-CNT}")
    A(EXALL)
    def e_loads():
        A(f"s_movk_i32 s{sT4}, 4096")
        for p in range(8):
            A(f"buffer_load_dwordx4 {vr(ER+4*p,4)}, v{KO+p}, {sr(SRD_EREC,4)}, {'s'+str(sT4) if p >= 4 else '0'} offen offset:{1024*(p&3)} {RL}")
    A(f"s_waitcnt vmcnt(0)\nv_cmp_eq_u32 vcc, s{sNonce}, v152\ns_cmp_eq_u64 vcc, -1\ns_cbranch_scc0 E_NOTYET")
    e_loads()
    A(f"s_mov_b32 s{sEdone}, 1\ns_branch E_J1")
    A.label("E_NOTYET")
    A(f"buffer_load_dword v152, v150, {sr(SRD_GRAN,4)}, s{sE0} offen {PL}")
    A.label("E_J1")
    A("s_waitcnt lgkmcnt(0)")
    A(f"v_readlane_b32 s{sT0}, v{vStart}, 25\nv_readfirstlane_b32 s{sT1}, v68\ns_mov_b32 s{sT5}, 0xffff")
    A(f"s_cmp_gt_u32 s{sT0}, {CAPT*8}\ns_cselect_b32 s{sT1}, 1, s{sT1}\ns_cmp_lg_u32 s{sT1}, 0\ns_cbranch_scc1 PRE_B5")
    for k in range(16):
        A(f"s_mov_b64 exec, {sr(MASK+2*k,2)}")
        A(f"v_mad_u32_u16 v{RK+k}, v{IN+k}, 1, v{RK+k}\nv_bfi_b32 v{KEYR+k}, s{sT5}, v{KEYR+k}, v{IN+k}")
        A(f"ds_write_b32 v{RK+k}, v{KEYR+k} offset:{KEY}")
    A(EXALL)
    A("s_branch PRE_B5")
    A.label("AUX_START")
    EB = 76
    A(f"v_subrev_u32 v66, 4096, v{o16}\nv_add_u32 v67, {P_E}, v66\ns_mul_i32 s64, s2, {CS*8}")
    A(f"v_mov_b32 v68, {NONCE}\nds_read_b32 v71, v68")
    for i in range(6): A(f"ds_read_b128 {vr(EB+4*i,4)}, v67 offset:{4096*i}")
    A("s_waitcnt vmcnt(0)")
    A(f"s_cmp_lg_u32 s{sW}, 4\ns_cbranch_scc1 EC6")
    A(f"{EXLO}\nds_read_b128 {vr(EB+24,4)}, v67 offset:24576\ns_add_u32 s65, s64, 24576\ns_waitcnt lgkmcnt(0)")
    A(f"buffer_store_dwordx4 {vr(EB+24,4)}, v66, {sr(SRD_EREC,4)}, s65 offen {RSt}\n{EXALL}")
    A.label("EC6")
    for i in range(6):
        A(f"s_waitcnt lgkmcnt({5-i})\nbuffer_store_dwordx4 {vr(EB+4*i,4)}, v66, {sr(SRD_EREC,4)}, s64 offen {RSt}\ns_add_u32 s64, s64, 4096")
    stp(8)
    A("v_mov_b64 v[104:105], 0\nv_mov_b64 v[106:107], 0\nv_mov_b32 v108, 0xffff\nv_mov_b32 v109, 0xffff\nv_mov_b32 v110, 0xffff\nv_mov_b32 v111, 0xffff")
    for i in range(4): A(f"ds_write_b128 v66, v[108:111] offset:{KEY+4096*i}")
    for i in range(8): A(f"ds_write_b128 v66, v[104:107] offset:{EE+4096*i}")
    arrive(A, SCTR, sE1)
    tr_addr(A, trA, WA, 66)
    WBf, QC = 192, 144
    A(f"v_lshrrev_b32 v66, 5, v{L}\nv_lshlrev_b32 v67, 4, v66")
    A(f"s_sub_u32 s64, s{sW}, 4\ns_lshl_b32 s64, s64, 5\nv_and_b32 v68, 31, v{L}\nv_add_u32 v68, s64, v68")
    A(f"v_cmp_gt_u32 {sr(MASK,2)}, 100, v68".replace("100, v68", "s65, v68") if False else f"s_movk_i32 s65, 100\nv_cmp_gt_u32 {sr(MASK,2)}, s65, v68")
    A(f"v_mul_u32_u24 v68, {RS}, v68\nv_lshl_add_u32 v68, v66, 3, v68\nv_add_u32 v68, {QQ}, v68\ns_mov_b32 s65, {NEG_L2E}")
    for half in range(2):
        for i in range(2):
            b = 2 * half + i
            for q in range(4): A(f"ds_read_b128 {vr(QC+16*i+4*q,4)}, v67 offset:{B1F+128*b+32*q}")
            for s in range(4):
                for j in range(2): A(f"ds_read_b64_tr_b16 {pr(WBf+16*i+4*s+2*j)}, v{trA+b} offset:{16384+4096*s+1024*j}")
        A("s_waitcnt lgkmcnt(0)")
        for i in range(2):
            for s in range(4): A(mfma(QC + 16 * i, WBf + 16 * i + 4 * s, XB + 4 * s, QC + 16 * i))
        A.nop(12)
        for i in range(2):
            for q in range(4):
                r = QC + 16 * i + 4 * q
                for k in range(4): A(f"v_mul_f32 v{r+k}, s65, v{r+k}")
                A(f"v_cvt_pk_bf16_f32 v{r}, v{r}, v{r+1}\nv_cvt_pk_bf16_f32 v{r+1}, v{r+2}, v{r+3}")
        A(f"s_mov_b64 exec, {sr(MASK,2)}")
        for i in range(2):
            for q in range(4): A(f"ds_write_b64 v68, {pr(QC+16*i+4*q)} offset:{128*half+64*i+16*q}")
        A(EXALL)
    stp(9)
    load_w_frags(A, trA)
    A("s_waitcnt vmcnt(0)")
    stp(10)
    arrive(A, ECTR, sT0)
    A(f"s_cmp_lg_u32 s{sT0}, 3\ns_cbranch_scc1 NOEPUB")
    A(f"s_lshl_b32 s64, s2, 7\ns_add_u32 s64, s64, {EFLG_OFF}\ns_mov_b64 exec, 1\nbuffer_store_dword v71, off, {sr(SRD_GRAN,4)}, s64 sc1\n{EXALL}")
    A.label("NOEPUB")
    A(f"s_cmp_lg_u32 s{sE1}, 7\ns_cbranch_scc1 PRE_B5")
    schedule(A)
    A.label("PRE_B5")
    A("s_waitcnt lgkmcnt(0)\ns_barrier")
    stp(13)
    A(f"v_lshlrev_b32 v66, 2, v{L}\nv_mov_b32 v67, {FBF}")
    A(f"ds_read_b32 v{vStart}, v66 offset:{START}\nds_read_b64 v[68:69], v67")
    A("s_waitcnt lgkmcnt(0)")
    A(f"v_readlane_b32 s{sT0}, v{vStart}, 25\nv_readfirstlane_b32 s{sE2}, v68\nv_readfirstlane_b32 s{sT2}, v69")
    A(f"s_add_u32 s{sT0}, s{sT0}, 7\ns_lshr_b32 s{sT0}, s{sT0}, 3")
    A(f"s_cmp_gt_u32 s{sT0}, {CAPT}\ns_cselect_b32 s{sE2}, 1, s{sE2}\ns_cselect_b32 s{sT0}, 0, s{sT0}")
    A(f"s_lshr_b32 s{sT1}, s{sT0}, 3\ns_and_b32 s{sT3}, s{sT0}, 7")
    A(f"s_add_u32 s{sT2}, s{sT2}, 7\ns_lshr_b32 s{sT2}, s{sT2}, 3")
    A(f"s_cmp_lt_u32 s{sT1}, s{sT2}\ns_cselect_b32 s{sT3}, 0, s{sT3}\ns_max_u32 s{sT1}, s{sT1}, s{sT2}")
    A(f"s_mul_i32 s{sG0}, s{sW}, s{sT1}\ns_min_u32 s{sT4}, s{sW}, s{sT3}\ns_add_u32 s{sG0}, s{sG0}, s{sT4}")
    A(f"s_add_u32 s{sG1}, s{sG0}, s{sT1}\ns_cmp_lt_u32 s{sW}, s{sT3}\ns_addc_u32 s{sG1}, s{sG1}, 0\ns_min_u32 s{sG1}, s{sG1}, s{sT0}")
    A(f"s_min_u32 s{sG0}, s{sG0}, s{sT0}")
    A(f"s_lshl_b32 s{sT0}, s{sG0}, 7\nv_add_u32 v{aIdx}, s{sT0}, v{aIdx}\nv_mad_u32_u24 v{aX}, v{incX}, s{sG0}, v{aX}")
    for l in read_idx() + read_aux(): A(l)
    A(f"s_lshl_b32 s{sG0}, s{sG0}, 3\ns_lshl_b32 s{sG1}, s{sG1}, 3")
    A(f"v_cmp_ge_u32 vcc, s{sG0}, v{vStart}")
    A(f"v_mov_b32 v{dmax}, 0\nv_mov_b64 {pr(chk)}, 0")
    A(f"s_bcnt1_i32_b64 s{sT0}, vcc\ns_sub_u32 s{sR}, s{sT0}, 1")
    A(f"v_readlane_b32 s{sBnd}, v{vStart}, s{sT0}\nv_readlane_b32 s{sT1}, v{vStart}, s{sR}")
    A("s_waitcnt lgkmcnt(0)")
    for l in calc_voff() + dma(cfg) + read_idx(): A(l)
    A(f"s_cmp_eq_u32 s{sT1}, s{sG0}\ns_cselect_b32 s{sHead}, 1, 0")
    for l in q_addr_read(0): A(l)
    A(f"s_cmp_ge_u32 s{sW}, 4\ns_cbranch_scc1 PRE_B6")
    A(f"s_cmp_lg_u32 s{sEdone}, 0\ns_cbranch_scc1 E_HAVE")
    A("s_waitcnt vmcnt(4)")
    A.label("E_CHK")
    A(f"v_cmp_eq_u32 vcc, s{sNonce}, v152\ns_cmp_eq_u64 vcc, -1\ns_cbranch_scc1 E_GOT")
    A(f"buffer_load_dword v152, v150, {sr(SRD_GRAN,4)}, s{sE0} offen {PL}\ns_waitcnt vmcnt(0)")
    spin_guard(A, "E_CHK")
    A.label("E_GOT")
    e_loads()
    A("s_waitcnt vmcnt(0)")
    A.label("E_HAVE")
    stp(14)
    A(f"s_cmp_lg_u32 s{sE2}, 0\ns_cbranch_scc1 PRE_B6")
    for k in range(16): A(f"v_lshlrev_b32 v{CA+k}, 1, v{RK+k}")
    A("s_waitcnt vmcnt(4)")
    for k in range(16):
        A(f"s_mov_b64 exec, {sr(MASK+2*k,2)}\nds_write_b64 v{CA+k}, {pr(ER+2*k)} offset:{EE}")
    A(EXALL)
    A.label("PRE_B6")
    A("s_waitcnt lgkmcnt(0)\ns_barrier")
    stp(15)
    A(f"s_cmp_lg_u32 s{sE2}, 0\ns_cbranch_scc1 M_FALLBACK")
    for b_ in range(4): A(f"v_mov_b64 {pr(ND+4*b_)}, 0\nv_mov_b64 {pr(ND+4*b_+2)}, {sr(sOne,2)}")
    A(f"s_cmp_ge_u32 s{sG0}, s{sG1}\ns_cbranch_scc1 M_LOOPDONE")
    for l in read_A5() + q_addr_calc(): A(l)
    for b_ in range(4):
        for l in q_read(b_): A(l)
    A(f"v_add_u32 v{aX}, v{incX}, v{aX}")
    A("s_waitcnt vmcnt(0)")
    for l in read_A() + calc_voff(): A(l)
    A("s_waitcnt lgkmcnt(0)")
    for l in dma(cfg): A(l)
    for l in block_mfmas(ZA, 0): A(l)
    A.nop(10)
    stp(16, True)
    main_loop(A, cfg, stp)
    A.label("M_LOOPDONE")
    A(f"v_add_f32 v{chk}, v{chk}, v{chk+1}\nv_add_f32 v{chk}, v{chk}, v{dmax}\nv_mov_b32 v{vtmp}, {FBF}\nv_mov_b32 v{vtmp+1}, 1")
    A(f"s_mov_b32 s{sT0}, 0x7b800000")
    A(f"v_cmpx_ngt_f32 vcc, s{sT0}, v{chk}\nds_write_b32 v{vtmp}, v{vtmp+1}\n{EXALL}")
    epi_consts(A)
    epi_pre(A)
    A("s_barrier")
    stp(18, True)
    A(f"ds_read_b32 v{vtmp+1}, v{vtmp}")
    epi_reads(A)
    A("s_waitcnt lgkmcnt(8)")
    if not cfg.get("nofb"): A(f"v_readfirstlane_b32 s{sT0}, v{vtmp+1}\ns_cmp_lg_u32 s{sT0}, 0\ns_cbranch_scc1 M_FALLBACK")
    A.label("M_EPI")
    epi_compute(A, cfg)
    if cfg.get("stamps"):
        stp(19)
        A("s_waitcnt vmcnt(0)")
        stp(20)
        srd(A, SRD_A, 24, 0x100000, WS_STAMP)
        A(f"s_lshl_b32 s64, s2, 3\ns_add_u32 s64, s64, s{sW}\ns_lshl_b32 s64, s64, 9\nv_lshlrev_b32 v70, 3, v{L}")
        A(f"buffer_store_dwordx2 v[72:73], v70, {sr(SRD_A,4)}, s64 offen")
    A("s_endpgm")
    fallback(A, cfg, RL)
    A.label("M_END")
    A("s_endpgm")
    return A

def w2_frags(A):
    L = vLane
    A(f"v_bfe_u32 v66, v{L}, 2, 2\nv_lshlrev_b32 v67, 12, v66\nv_lshrrev_b32 v68, 5, v{L}\nv_lshl_add_u32 v67, v68, 8, v67")
    A(f"v_bfe_u32 v68, v{L}, 4, 1\nv_lshl_add_u32 v67, v68, 5, v67\nv_and_b32 v68, 3, v{L}\nv_lshl_add_u32 v67, v68, 3, v67")
    A(f"s_and_b32 s{sT0}, s{sW}, 1\nv_xor_b32 v66, s{sT0}, v66\nv_lshl_add_u32 v68, v66, 6, v67\nv_xor_b32 v69, 0x80, v68")
    for s in range(8):
        for i in range(2): A(f"ds_read_b64_tr_b16 {pr(W2R+4*s+2*i)}, v{68+i} offset:{W2RAW+512*s}")

def main_loop(A, cfg, stp):
    al = lambda: A(".p2align 6") if cfg.get("align", 1) else None
    al()
    A.label("M_LOOP")
    A(f"s_sub_u32 s{sS}, s{sBnd}, s{sG0}\ns_cmp_le_u32 s{sS}, 8\ns_cbranch_scc1 M_DISP")
    tile(A, cfg, 0)
    A.label("M_NEXT")
    A(f"s_add_u32 s{sG0}, s{sG0}, 8\ns_cmp_lt_u32 s{sG0}, s{sG1}\ns_cbranch_scc1 M_LOOP")
    A("s_branch M_LOOPEXIT")
    A.label("M_DISP")
    A(f"s_cmp_gt_u32 s{sS}, 4\ns_cbranch_scc1 M_DISP58")
    A(f"s_cmp_eq_u32 s{sS}, 1\ns_cbranch_scc1 M_V1\ns_cmp_eq_u32 s{sS}, 2\ns_cbranch_scc1 M_V2\ns_cmp_eq_u32 s{sS}, 3\ns_cbranch_scc1 M_V3\ns_branch M_V4")
    A.label("M_DISP58")
    A(f"s_cmp_eq_u32 s{sS}, 5\ns_cbranch_scc1 M_V5\ns_cmp_eq_u32 s{sS}, 6\ns_cbranch_scc1 M_V6\ns_cmp_eq_u32 s{sS}, 7\ns_cbranch_scc1 M_V7\ns_branch M_V8")
    for v in range(1, 9):
        al()
        A.label(f"M_V{v}")
        tile(A, cfg, v)
        A("s_branch M_FLUSH")
    A.label("M_FLUSH")
    flush_calc(A, SND)
    A(f"s_add_u32 s{sR}, s{sR}, 1\ns_add_u32 s{sT0}, s{sR}, 1")
    A(f"v_readlane_b32 s{sBnd}, v{vStart}, s{sT0}")
    A(f"s_cmp_eq_u32 s{sHead}, 0\ns_cbranch_scc1 M_FLUSHT")
    flush_rows(A)
    A("s_branch M_NEXT")
    A.label("M_FLUSHT")
    A(f"ds_write_b128 v{aT}, {vr(F0,4)}\nds_write_b128 v{aT}, {vr(F0+4,4)} offset:16")
    A(f"s_lshl_b32 s{sT0}, s{sW}, 2\nv_mov_b32 v{vtmp}, s{sT0}\nv_mov_b32 v{vtmp+1}, 1\ns_mov_b32 s{sHead}, 1")
    A(f"ds_write_b32 v{vtmp}, v{vtmp+1} offset:{TFLG}")
    A("s_branch M_NEXT")
    A.label("M_LOOPEXIT")
    stp(17)
    A(f"s_cmp_ge_u32 s{sR}, 25\ns_cbranch_scc1 M_LOOPDONE")
    A(f"v_readlane_b32 s{sT1}, v{vStart}, s{sR}")
    for l in fl_addr_read(): A(l)
    A(f"s_cmp_ge_u32 s{sT1}, s{sG1}\ns_cbranch_scc1 M_LOOPDONE")
    flush_calc(A, ND)
    A(f"s_lshl_b32 s{sT0}, s{sW}, 2\nv_mov_b32 v{vtmp}, s{sT0}")
    A.label("M_TWAIT")
    A(f"ds_read_b32 v{vtmp+1}, v{vtmp} offset:{TFLG+4}")
    A(f"ds_read_b128 {vr(R0,4)}, v{aT} offset:2048\nds_read_b128 {vr(R0+4,4)}, v{aT} offset:2064")
    A("s_waitcnt lgkmcnt(0)")
    A(f"v_readfirstlane_b32 s{sT0}, v{vtmp+1}\ns_cmp_lg_u32 s{sT0}, 0\ns_cbranch_scc1 M_TGOT")
    spin_guard(A, "M_TWAIT")
    A.label("M_TGOT")
    for b_ in range(4): A(f"v_pk_add_f32 {pr(F0+2*b_)}, {pr(F0+2*b_)}, {pr(R0+2*b_)}")
    flush_rows(A)

def fallback(A, cfg, RL):
    L = vLane
    A.label("M_FALLBACK")
    A("s_waitcnt vmcnt(0) lgkmcnt(0)\ns_barrier")
    loop_consts(A)
    fi, fH16, fQ, fS, f0, f1, f2, f3, f4, f5 = 2, 3, 4, 5, 12, 13, 14, 15, 26, 27
    A(f"v_lshlrev_b32 v66, 4, v0\nv_mov_b64 v[68:69], 0\nv_mov_b64 v[70:71], 0")
    for i in range(6): A(f"ds_write_b128 v66, v[68:71] offset:{CNT+8192*i}")
    rest = (SF + 99 * 512 - CNT - 6 * 8192) // 16
    A(f"v_cmpx_gt_u32 vcc, {rest}, v0\nds_write_b128 v66, v[68:71] offset:{CNT+8192*6}\n{EXALL}")
    for b_ in range(4):
        for l in q_read(b_): A(l)
    A(f"v_and_b32 v{fi}, 31, v{L}\nv_lshrrev_b32 v{fH16}, 5, v{L}\nv_lshlrev_b32 v{fH16}, 4, v{fH16}")
    A(f"v_lshlrev_b32 v{fQ}, 1, v{fi}\nv_add_u32 v{fQ}, {QQ}, v{fQ}\nv_lshlrev_b32 v{fS}, 2, v{fi}\nv_add_u32 v{fS}, {SF}, v{fS}")
    A("s_waitcnt lgkmcnt(0)\ns_barrier")
    sC, sCe, sP, sEnd = sG0, sG1, sR, sBnd
    A(f"s_lshl_b32 s{sC}, s{sW}, 5\ns_add_u32 s{sCe}, s{sC}, 32")
    A.label("F_SEG")
    A(f"s_lshl_b32 s{sT0}, s{sC}, 8\ns_add_u32 s{sT0}, s{sT0}, s{sB}\ns_lshl_b32 s{sT0}, s{sT0}, 3")
    A(f"buffer_load_dword v{f0}, off, {sr(SRD_GRAN,4)}, s{sT0} {RL}\ns_waitcnt vmcnt(0)")
    A(f"v_readfirstlane_b32 s{sP}, v{f0}")
    A(f"s_lshr_b32 s{sEnd}, s{sP}, 20\ns_and_b32 s{sP}, s{sP}, 0xfffff\ns_add_u32 s{sEnd}, s{sEnd}, s{sP}")
    A.label("F_PIECE")
    A(f"s_cmp_ge_u32 s{sP}, s{sEnd}\ns_cbranch_scc1 F_SEGEND")
    A(f"v_add_u32 v{f0}, s{sP}, v{fi}\nv_cmp_gt_u32 {sr(MASK,2)}, s{sEnd}, v{f0}\nv_lshlrev_b32 v{f1}, 2, v{f0}\nv_lshlrev_b32 v{f0}, 3, v{f0}")
    A(f"buffer_load_dword v{f2}, v{f1}, {sr(SRD_KEYS,4)}, 0 offen {RL}\nbuffer_load_dwordx2 {pr(A5)}, v{f0}, {sr(SRD_EREC,4)}, 0 offen {RL}")
    A("s_waitcnt vmcnt(0)")
    A(f"v_and_b32 v{f3}, 0xffff, v{f2}\nv_lshrrev_b32 v{f2}, 16, v{f2}\nv_subrev_u32 v{f2}, s{sN0}, v{f2}\nv_mov_b32 v{f4}, 98\nv_mov_b32 v{f5}, 0xffff")
    A(f"v_cndmask_b32 v{f2}, v{f4}, v{f2}, {sr(MASK,2)}\nv_cndmask_b32 v{f3}, v{f5}, v{f3}, {sr(MASK,2)}")
    A(f"v_lshl_add_u32 v{f3}, v{f3}, 7, v{fH16}")
    for s in range(4): A(f"buffer_load_dwordx4 {vr(A0+4*s,4)}, v{f3}, {sr(SRD_X,4)}, 0 offen offset:{32*s}")
    A(f"s_and_b64 {sr(MASK+2,2)}, {sr(MASK,2)}, {sr(sHi,2)}\ns_and_b64 {sr(MASK+4,2)}, {sr(MASK,2)}, {sr(sLo,2)}")
    A(f"v_cndmask_b32 v{A5}, 0, v{A5}, {sr(MASK+2,2)}\nv_cndmask_b32 v{A5+1}, 0, v{A5+1}, {sr(MASK+2,2)}")
    A(f"v_mov_b64 {pr(A5+2)}, {pr(A5)}")
    A(f"v_lshlrev_b32 v{f4}, 2, v{f2}\nv_mov_b32 v{f5}, 16\ns_mov_b64 exec, {sr(MASK+4,2)}\nds_add_u32 v{f4}, v{f5} offset:{CNT}\n{EXALL}")
    QA, SA = 76, 92
    for r in range(16): A(f"ds_bpermute_b32 v{QA+r}, v{fH16}, v{f2} offset:{((r>>2)*8+(r&3))*4}")
    A("s_waitcnt lgkmcnt(0)")
    A(f"s_movk_i32 s{sT0}, {RS}")
    for r in range(16): A(f"v_lshl_add_u32 v{SA+r}, v{QA+r}, 9, v{fS}\nv_mad_u32_u24 v{QA+r}, v{QA+r}, s{sT0}, v{fQ}")
    A("s_waitcnt vmcnt(0)")
    for b_ in range(4):
        for l in block_mfmas(ZA, b_): A(l)
        for r in range(16): A(f"ds_read_u16 v{T0+r}, v{QA+r} offset:{64*b_}")
        A("s_waitcnt lgkmcnt(0)")
        for r in range(16): A(f"v_lshlrev_b32 v{T0+r}, 16, v{T0+r}\nv_add_f32 v{ZB+r}, v{ZA+r}, v{T0+r}\nv_exp_f32 v{T0+r}, v{ZB+r}")
        for r in range(16): A(f"v_add_f32 v{T0+r}, 1.0, v{T0+r}")
        for r in range(16): A(f"v_rcp_f32 v{T0+r}, v{T0+r}")
        for r in range(16): A(f"v_mul_f32 v{ZB+r}, v{ZB+r}, v{T0+r}")
        for r in range(16): A(f"ds_add_f32 v{SA+r}, v{ZB+r} offset:{128*b_}")
        A("s_waitcnt lgkmcnt(0)")
    A(f"s_add_u32 s{sP}, s{sP}, 32\ns_branch F_PIECE")
    A.label("F_SEGEND")
    A(f"s_add_u32 s{sC}, s{sC}, 1\ns_cmp_lt_u32 s{sC}, s{sCe}\ns_cbranch_scc1 F_SEG")
    A("s_waitcnt vmcnt(0) lgkmcnt(0)\ns_barrier")
    for i in range(7):
        A(f"v_lshrrev_b32 v{f0}, 5, v0\nv_add_u32 v{f0}, {16*i}, v{f0}\nv_min_u32 v{f0}, 98, v{f0}")
        A(f"v_lshl_add_u32 v{f1}, v{f0}, 9, v{fS}\nv_mul_u32_u24 v{f0}, {RS}, v{f0}\nv_add_u32 v{f0}, v{f0}, v{cS}")
        A(f"ds_read2_b32 v[76:77], v{f1} offset0:0 offset1:32\nds_read2_b32 v[78:79], v{f1} offset0:64 offset1:96\ns_waitcnt lgkmcnt(0)")
        A(f"v_cvt_pk_bf16_f32 v76, v76, v77\nv_cvt_pk_bf16_f32 v77, v78, v79\nds_write_b64 v{f0}, v[76:77]\ns_waitcnt lgkmcnt(0)")
    epi_consts(A)
    epi_pre(A)
    A("s_barrier")
    epi_reads(A)
    A("s_branch M_EPI")
```

```python
from asmlib import *
from layout import *
E = 800000
NEG_L2E = "0xbfb8aa3b"

def srd(A, d, base, nbytes, off=0):
    if off:
        A(f"s_add_u32 s{d}, s{base}, {hex(off)}\ns_addc_u32 s{d+1}, s{base+1}, 0")
    else:
        A(f"s_mov_b32 s{d}, s{base}\ns_mov_b32 s{d+1}, s{base+1}")
    A(f"s_mov_b32 s{d+2}, {hex(nbytes)}\ns_mov_b32 s{d+3}, 0x20000")

def wave_scan(A, v, op="v_add_u32", other=None):
    regs = [(v, op)] + (other or [])
    steps = ["row_shr:1 row_mask:0xf", "row_shr:2 row_mask:0xf", "row_shr:4 row_mask:0xf", "row_shr:8 row_mask:0xf",
             "row_bcast:15 row_mask:0xa", "row_bcast:31 row_mask:0xc"]
    for st in steps:
        A.nop(max(0, 2 - (len(regs) - 1)) if st != steps[0] else 2)
        for r, o in regs:
            A(f"{o}_dpp v{r}, v{r}, v{r} {st} bank_mask:0xf")

def stamp(A, cfg, s):
    if cfg.get("stamps"): A(f"s_memrealtime s[{s}:{s+1}]")

def stamp_store(A, cfg, s0, n, srdreg, wsbase, off, wgreg, vtmp, nper):
    if not cfg.get("stamps"): return
    A("s_waitcnt lgkmcnt(0)")
    srd(A, srdreg, wsbase, 0x100000, off)
    A(f"s_mul_i32 s{srdreg+4}, s{wgreg}, {nper*8}")
    A("s_mov_b64 exec, -1")
    A(f"v_lshlrev_b32 v{vtmp+2}, 3, v0")
    for i in range(n):
        A(f"v_writelane_b32 v{vtmp}, s{s0+2*i}, {i}\nv_writelane_b32 v{vtmp+1}, s{s0+2*i+1}, {i}")
    A(f"s_mov_b64 exec, {(1<<n)-1}")
    A(f"buffer_store_dwordx2 v[{vtmp}:{vtmp+1}], v{vtmp+2}, s[{srdreg}:{srdreg+3}], s{srdreg+4} offen")

P1_LDS_CNT, P1_LDS_BASE, P1_LDS_KEY = 0, 1024, 2048
P1_LDS_E = P1_LDS_KEY + CH * 4
P1_LDS = P1_LDS_E + CH * 8
P1_THREADS = 896

def gen_p1(cfg):
    A = Asm()
    st = cfg.get("p1_store", "")
    ld = cfg.get("p1_load", "")
    A("s_cmp_ge_u32 s2, 256\ns_cbranch_scc1 P1_END")
    stamp(A, cfg, 60)
    A("s_load_dwordx4 s[4:7], s[0:1], 8\ns_load_dwordx2 s[8:9], s[0:1], 24\ns_load_dwordx2 s[10:11], s[0:1], 80\ns_load_dwordx8 s[12:19], s[0:1], 32")
    A("v_lshrrev_b32 v1, 6, v0\nv_lshlrev_b32 v2, 2, v0\nv_mov_b32 v3, 0")
    A("v_readfirstlane_b32 s3, v1")
    A(f"s_mul_i32 s44, s2, {CH}")
    A(f"s_sub_u32 s45, {E}, s44\ns_min_u32 s45, s45, {CH}\ns_lshr_b32 s45, s45, 2")
    A("s_cmp_eq_u32 s3, 13\ns_cbranch_scc1 P1_PREP")
    A("v_cmp_gt_u32 vcc, 256, v0\ns_and_saveexec_b64 s[46:47], vcc\nds_write_b32 v2, v3\ns_mov_b64 exec, s[46:47]")
    A("v_lshlrev_b32 v4, 4, v0\nv_lshlrev_b32 v5, 5, v0")
    A("s_lshl_b32 s48, s44, 2\ns_lshl_b32 s49, s44, 3")
    A("v_cmp_gt_u32 s[46:47], s45, v0")
    A("s_waitcnt lgkmcnt(0)")
    stamp(A, cfg, 62)
    srd(A, 20, 8, E * 4); srd(A, 24, 6, E * 4); srd(A, 28, 4, E * 8)
    A("s_mov_b64 exec, s[46:47]")
    A(f"buffer_load_dwordx4 v[8:11], v4, s[20:23], s48 offen {ld}")
    A(f"buffer_load_dwordx4 v[12:15], v4, s[24:27], s48 offen {ld}")
    A(f"buffer_load_dwordx4 v[16:19], v5, s[28:31], s49 offen {ld}")
    A(f"buffer_load_dwordx4 v[20:23], v5, s[28:31], s49 offen offset:16 {ld}")
    stamp(A, cfg, 64)
    srd(A, 32, 10, E * 4, WS_KEYS); srd(A, 36, 10, E * 8, WS_EREC); srd(A, 40, 10, 65537 * 4, WS_OFFS)
    A("s_mov_b32 s50, 42800\nv_mov_b32 v6, 1")
    A("s_barrier")
    stamp(A, cfg, 66)
    A("s_waitcnt vmcnt(3)")
    stamp(A, cfg, 68)
    for i in range(4):
        A(f"v_mul_u32_u24 v{24+i}, s50, v{8+i}\nv_lshrrev_b32 v{24+i}, 22, v{24+i}\nv_lshlrev_b32 v{24+i}, 2, v{24+i}")
        A(f"ds_add_rtn_u32 v{28+i}, v{24+i}, v6")
    A("s_mov_b64 exec, -1")
    A("v_and_b32 v7, 63, v0\nv_lshlrev_b32 v7, 4, v7")
    A("s_waitcnt lgkmcnt(0)\ns_barrier")
    A("ds_read_b128 v[32:35], v7")
    A("s_waitcnt lgkmcnt(0)")
    A("v_add_u32 v37, v32, v33\nv_add_u32 v38, v37, v34\nv_add_u32 v40, v38, v35\nv_mov_b32 v41, v40")
    wave_scan(A, 40)
    A("v_sub_u32 v36, v40, v41")
    A("v_add_u32 v39, v36, v38\nv_add_u32 v38, v36, v37\nv_add_u32 v37, v36, v32")
    A(f"ds_write_b128 v7, v[36:39] offset:{P1_LDS_BASE}")
    A("s_cmp_lg_u32 s3, 0\ns_cbranch_scc1 P1_NOOFFS")
    for i in range(4):
        A(f"v_min_u32 v{32+i}, 255, v{32+i}\nv_add_u32 v{44+i}, s44, v{36+i}\nv_lshl_or_b32 v{44+i}, v{32+i}, 24, v{44+i}")
    A("s_lshl_b32 s51, s2, 10")
    A(f"buffer_store_dwordx4 v[44:47], v7, s[40:43], s51 offen {st}")
    A("s_cmp_lg_u32 s2, 255\ns_cbranch_scc1 P1_NOOFFS")
    A(f"v_mov_b32 v48, {E}\nv_mov_b32 v49, 0x40000")
    A(f"buffer_store_dword v48, v49, s[40:43], 0 offen {st}")
    A.label("P1_NOOFFS")
    A("s_mov_b64 exec, s[46:47]")
    for i in range(4):
        A(f"ds_read_b32 v{32+i}, v{24+i} offset:{P1_LDS_BASE}")
    A("s_waitcnt vmcnt(0) lgkmcnt(0)") if cfg.get("p1_simplewait", True) else None
    stamp(A, cfg, 70)
    for i in range(4):
        A(f"v_add_lshl_u32 v{32+i}, v{32+i}, v{28+i}, 2")
        A(f"v_lshl_or_b32 v{12+i}, v{8+i}, 16, v{12+i}")
        A(f"ds_write_b32 v{32+i}, v{12+i} offset:{P1_LDS_KEY}")
        A(f"v_lshlrev_b32 v{36+i}, 1, v{32+i}")
        A(f"ds_write_b64 v{36+i}, v[{16+2*i}:{17+2*i}] offset:{P1_LDS_E}")
    A("s_lshl_b32 s52, s45, 4\ns_add_u32 s53, s49, s52\nv_add_u32 v5, s52, v4")
    A("s_waitcnt lgkmcnt(0)\ns_barrier")
    stamp(A, cfg, 72)
    A(f"ds_read_b128 v[8:11], v4 offset:{P1_LDS_KEY}")
    A(f"ds_read_b128 v[12:15], v4 offset:{P1_LDS_E}")
    A(f"ds_read_b128 v[16:19], v5 offset:{P1_LDS_E}")
    A(f"s_waitcnt lgkmcnt(2)\nbuffer_store_dwordx4 v[8:11], v4, s[32:35], s48 offen {st}")
    A(f"s_waitcnt lgkmcnt(1)\nbuffer_store_dwordx4 v[12:15], v4, s[36:39], s49 offen {st}")
    A(f"s_waitcnt lgkmcnt(0)\nbuffer_store_dwordx4 v[16:19], v4, s[36:39], s53 offen {st}")
    if cfg.get("stamps"):
        stamp(A, cfg, 74)
        A("s_waitcnt vmcnt(0)")
        stamp(A, cfg, 76)
        A("s_cmp_lg_u32 s3, 0\ns_cbranch_scc1 P1_END")
        stamp_store(A, cfg, 60, 9, 80, 10, WS_STAMP1, 2, 50, 9)
    A("s_endpgm")
    A.label("P1_PREP")
    A("s_barrier\ns_barrier")
    A("v_and_b32 v1, 63, v0")
    A("s_waitcnt lgkmcnt(0)")
    srd(A, 20, 12, 132 * 128 * 2)
    srd(A, 24, 16, 128 * 64 * 2)
    srd(A, 28, 14, 128 * 2)
    srd(A, 32, 18, 64 * 2)
    srd(A, 40, 10, 52224, WS_PREP)
    A(f"s_mov_b32 s50, {NEG_L2E}")
    A("s_lshl_b32 s51, s2, 8\nv_lshlrev_b32 v2, 2, v1")
    A("s_and_b32 s52, s2, 3\ns_lshl_b32 s52, s52, 4\nv_lshrrev_b32 v3, 2, v1\nv_add_u32 v3, s52, v3")
    A("v_and_b32 v4, 3, v1")
    A("v_lshrrev_b32 v5, 5, v3\nv_and_b32 v6, 31, v3")
    A("v_lshlrev_b32 v5, 3, v5\nv_lshl_add_u32 v5, v4, 1, v5")
    A("s_bfe_u32 s53, s2, 0x40002")
    A("s_cmp_ge_u32 s2, 128\ns_cbranch_scc1 P1_PREP_W2")
    A("s_and_b32 s54, s53, 3\ns_lshl_b32 s54, s54, 4\ns_and_b32 s55, s2, 64\ns_add_u32 s54, s54, s55")
    A("s_lshr_b32 s55, s53, 2\ns_lshl_b32 s55, s55, 5")
    A("v_add_u32 v5, s54, v5\nv_add_u32 v6, s55, v6\nv_lshlrev_b32 v6, 1, v6\nv_lshl_add_u32 v5, v5, 8, v6")
    A("buffer_load_ushort v8, v5, s[20:23], 0 offen\nbuffer_load_ushort v9, v5, s[20:23], 0 offen offset:256")
    A("s_waitcnt vmcnt(0)")
    A("v_lshl_or_b32 v10, v9, 16, v8")
    A("s_cmp_ge_u32 s2, 64\ns_cbranch_scc1 P1_PREP_ST")
    A("v_lshlrev_b32 v8, 16, v8\nv_lshlrev_b32 v9, 16, v9\nv_mul_f32 v8, s50, v8\nv_mul_f32 v9, s50, v9\nv_cvt_pk_bf16_f32 v10, v8, v9")
    A("s_branch P1_PREP_ST")
    A.label("P1_PREP_W2")
    A("s_cmp_ge_u32 s2, 192\ns_cbranch_scc1 P1_PREP_WC")
    A("s_and_b32 s54, s53, 7\ns_lshl_b32 s54, s54, 4\ns_lshr_b32 s55, s53, 3\ns_lshl_b32 s55, s55, 5")
    A("v_add_u32 v5, s54, v5")
    A("v_and_b32 v7, 3, v5\nv_lshrrev_b32 v5, 2, v5\nv_lshl_add_u32 v5, v7, 5, v5")
    A("v_add_u32 v6, s55, v6\nv_lshlrev_b32 v6, 1, v6\nv_lshl_add_u32 v5, v5, 7, v6")
    A("s_movk_i32 s54, 0x1000")
    A("buffer_load_ushort v8, v5, s[24:27], 0 offen\nbuffer_load_ushort v9, v5, s[24:27], s54 offen")
    A("s_waitcnt vmcnt(0)")
    A("v_lshl_or_b32 v10, v9, 16, v8")
    A("s_branch P1_PREP_ST")
    A.label("P1_PREP_WC")
    A("s_cmp_ge_u32 s2, 200\ns_cbranch_scc1 P1_PREP_B")
    A("s_and_b32 s54, s2, 3\ns_add_u32 s54, s54, 128\ns_lshl_b32 s54, s54, 8")
    A("buffer_load_dword v7, v2, s[20:23], s54 offen")
    A("s_waitcnt vmcnt(0)")
    A("v_lshlrev_b32 v8, 16, v7\nv_and_b32 v9, 0xffff0000, v7\nv_mul_f32 v8, s50, v8\nv_mul_f32 v9, s50, v9\nv_cvt_pk_bf16_f32 v10, v8, v9")
    A("s_cmp_lt_u32 s2, 196\ns_cbranch_scc1 P1_PREP_ST")
    A("v_lshlrev_b32 v11, 16, v10\nv_and_b32 v12, 0xffff0000, v10\nv_sub_f32 v8, v8, v11\nv_sub_f32 v9, v9, v12\nv_cvt_pk_bf16_f32 v10, v8, v9")
    A("s_branch P1_PREP_ST")
    A.label("P1_PREP_B")
    A("s_cmp_ge_u32 s2, 203\ns_cbranch_scc1 P1_END")
    A("v_lshlrev_b32 v5, 1, v1")
    A("s_cmp_eq_u32 s2, 202\ns_cbranch_scc1 P1_PREP_B2")
    A("s_sub_u32 s54, s2, 200\ns_lshl_b32 s54, s54, 7")
    A("buffer_load_ushort v8, v5, s[28:31], s54 offen")
    A("s_branch P1_PREP_B3")
    A.label("P1_PREP_B2")
    A("buffer_load_ushort v8, v5, s[32:35], 0 offen")
    A.label("P1_PREP_B3")
    A("s_waitcnt vmcnt(0)")
    A("v_lshlrev_b32 v10, 16, v8")
    A.label("P1_PREP_ST")
    A(f"buffer_store_dword v10, v2, s[40:43], s51 offen {st}")
    A.label("P1_END")
    A("s_endpgm")
    return A
```

```python
import sys, json
from asmlib import *
import fz
from build import HEAD, kernel
def build(cfg, outfile):
    A = fz.gen(cfg); lint(A.lines)
    name = "standalone__edge_featured_mpnn_mpnn__graph_kernel"
    s = HEAD + f"; @launch grid=(256,1,1) block=(512,1,1) lds={fz.LDS_TOTAL}\n"
    s += '.amdgcn_target "amdgcn-amd-amdhsa--gfx950"\n.text\n'
    c, d = kernel(name, A, 256, 102)
    s += c + '.section .rodata,"a"\n' + d
    open(outfile, "w").write(s)
if __name__ == "__main__":
    build(json.loads(sys.argv[2]) if len(sys.argv) > 2 else {}, sys.argv[1])
```

```python
import sys, json, importlib
from asmlib import *
from build import HEAD, kernel
def build(cfg, outfile):
    fz = importlib.import_module(cfg.get("mod", "fz"))
    A = fz.gen(cfg); lint(A.lines)
    name = "standalone__edge_featured_mpnn_mpnn__graph_kernel"
    c, d = kernel(name, A, 256, 102)
    if cfg.get("probe"):
        a, b, mult = cfg["probe"]
        base = fz.WS_STAMP + cfg.get("probe_wave", 0) * 512
        P = Asm()
        P("s_cmp_lg_u32 s2, 0\ns_cbranch_scc1 PB_END")
        P("s_load_dwordx2 s[4:5], s[0:1], 80\ns_memrealtime s[10:11]\ns_waitcnt lgkmcnt(0)")
        P(f"s_add_u32 s6, s4, {base+8*a}\ns_addc_u32 s7, s5, 0\ns_load_dwordx2 s[12:13], s[6:7], 0")
        if b >= 0: P(f"s_add_u32 s8, s4, {base+8*b}\ns_addc_u32 s9, s5, 0\ns_load_dwordx2 s[14:15], s[8:9], 0")
        else: P("s_mov_b32 s14, s10")
        P(f"s_waitcnt lgkmcnt(0)\ns_sub_u32 s16, s14, s12\ns_min_u32 s16, s16, 20000\ns_mul_i32 s16, s16, {mult}")
        P.label("PB_SPIN")
        P("s_memrealtime s[18:19]\ns_waitcnt lgkmcnt(0)\ns_sub_u32 s18, s18, s10\ns_cmp_lt_u32 s18, s16\ns_cbranch_scc1 PB_SPIN")
        P.label("PB_END")
        P("s_endpgm")
        c2, d2 = kernel("probe_kernel", P, 8, 32)
        s = HEAD + f"; @launch kernel={name} grid=(256,1,1) block=(512,1,1) lds={fz.LDS_TOTAL}\n; @launch kernel=probe_kernel grid=(1,1,1) block=(64,1,1) lds=0\n"
        c += c2; d += d2
    else:
        s = HEAD + f"; @launch grid=(256,1,1) block=(512,1,1) lds={fz.LDS_TOTAL}\n"
    s += '.amdgcn_target "amdgcn-amd-amdhsa--gfx950"\n.text\n'
    s += c + '.section .rodata,"a"\n' + d
    open(outfile, "w").write(s)
if __name__ == "__main__":
    build(json.loads(sys.argv[2]) if len(sys.argv) > 2 else {}, sys.argv[1])
```

```python
import sys, json, importlib
from asmlib import *
from build import HEAD, kernel
DOC = """; One persistent launch, 256 workgroups (one per CU), generated by a script written for this kernel.
"""
def build(cfg, outfile):
    fz = importlib.import_module(cfg.get("mod", "fz"))
    A = fz.gen(cfg); lint(A.lines)
    name = "standalone__edge_featured_mpnn_mpnn__graph_kernel"
    c, d = kernel(name, A, 256, 102, "  .amdhsa_float_denorm_mode_32 3\n" if cfg.get("denorm", 1) else "")
    if cfg.get("probe2"):
        kind, b, mult, pw = cfg["probe2"]
        P = Asm()
        P("s_cmp_lg_u32 s2, 0\ns_cbranch_scc1 PB_END")
        P("s_load_dwordx2 s[4:5], s[0:1], 80\ns_memrealtime s[10:11]\nv_lshlrev_b32 v1, 12, v0\ns_waitcnt lgkmcnt(0)")
        fz.srd(P, 12, 4, 0x100000, fz.WS_STAMP)
        for i in range(4):
            P(f"s_mov_b32 s20, {i*64*4096 + pw*512}")
            P(f"buffer_load_dword v{4+i}, v1, s[12:15], s20 offen\nbuffer_load_dword v{8+i}, v1, s[12:15], s20 offen offset:{8*b}")
        P("s_waitcnt vmcnt(0)")
        if kind == "xcc":
            P("v_and_b32 v2, 7, v0\nv_lshlrev_b32 v2, 2, v2\nds_bpermute_b32 v3, v2, v8\ns_waitcnt lgkmcnt(0)\ns_mov_b32 s16, 0")
            for i in range(4): P(f"v_cmp_eq_u32 vcc, v3, v{8+i}\ns_bcnt1_i32_b64 s17, vcc\ns_add_u32 s16, s16, s17")
        else:
            op = "v_max_u32" if kind == "max" else "v_min_u32"
            P(f"v_min_u32 v4, v4, v5\nv_min_u32 v6, v6, v7\nv_min_u32 v4, v4, v6\n{op} v8, v8, v9\n{op} v10, v10, v11\n{op} v8, v8, v10")
            fz.wave_scan(P, [(4, "v_min_u32"), (8, op)])
            P("s_nop 1\nv_readlane_b32 s17, v4, 63\nv_readlane_b32 s16, v8, 63\ns_nop 3")
            if b < 0: P("s_mov_b32 s16, s10")
            P("s_sub_u32 s16, s16, s17")
        P(f"s_min_u32 s16, s16, 20000\ns_mul_i32 s16, s16, {mult}")
        P.label("PB_SPIN")
        P("s_memrealtime s[18:19]\ns_waitcnt lgkmcnt(0)\ns_sub_u32 s18, s18, s10\ns_cmp_lt_u32 s18, s16\ns_cbranch_scc1 PB_SPIN")
        P.label("PB_END")
        P("s_endpgm")
        c2, d2 = kernel("probe_kernel", P, 16, 32)
        s = HEAD + f"; @launch kernel={name} grid=(256,1,1) block=(512,1,1) lds={fz.LDS_TOTAL}\n; @launch kernel=probe_kernel grid=(1,1,1) block=(64,1,1) lds=0\n"
        c += c2; d += d2
    elif cfg.get("probe"):
        a, b, mult = cfg["probe"]
        base = fz.WS_STAMP + cfg.get("probe_wave", 0) * 512
        P = Asm()
        P("s_cmp_lg_u32 s2, 0\ns_cbranch_scc1 PB_END")
        P("s_load_dwordx2 s[4:5], s[0:1], 80\ns_memrealtime s[10:11]\ns_waitcnt lgkmcnt(0)")
        P(f"s_add_u32 s6, s4, {base+8*a}\ns_addc_u32 s7, s5, 0\ns_load_dwordx2 s[12:13], s[6:7], 0")
        if b >= 0: P(f"s_add_u32 s8, s4, {base+8*b}\ns_addc_u32 s9, s5, 0\ns_load_dwordx2 s[14:15], s[8:9], 0")
        else: P("s_mov_b32 s14, s10")
        P(f"s_waitcnt lgkmcnt(0)\ns_sub_u32 s16, s14, s12\ns_min_u32 s16, s16, 20000\ns_mul_i32 s16, s16, {mult}")
        P.label("PB_SPIN")
        P("s_memrealtime s[18:19]\ns_waitcnt lgkmcnt(0)\ns_sub_u32 s18, s18, s10\ns_cmp_lt_u32 s18, s16\ns_cbranch_scc1 PB_SPIN")
        P.label("PB_END")
        P("s_endpgm")
        c2, d2 = kernel("probe_kernel", P, 8, 32)
        s = HEAD + f"; @launch kernel={name} grid=(256,1,1) block=(512,1,1) lds={fz.LDS_TOTAL}\n; @launch kernel=probe_kernel grid=(1,1,1) block=(64,1,1) lds=0\n"
        c += c2; d += d2
    else:
        s = HEAD + f"; @launch grid=(256,1,1) block=(512,1,1) lds={fz.LDS_TOTAL}\n"
    s += '.amdgcn_target "amdgcn-amd-amdhsa--gfx950"\n' + DOC + '.text\n'
    s += c + '.section .rodata,"a"\n' + d
    open(outfile, "w").write(s)
if __name__ == "__main__":
    build(json.loads(sys.argv[2]) if len(sys.argv) > 2 else {}, sys.argv[1])
```
